```python
import torch

def _softmax(x, axis=-1):
    return torch.softmax(x, dim=axis)
def _gelu(x):
    return torch.nn.functional.gelu(x, approximate="tanh")
def _silu(x):
    return torch.nn.functional.silu(x)
def _sigmoid(x):
    return torch.sigmoid(x)
def _layernorm(x, axis=-1, eps=1e-5):
    m = x.mean(dim=axis, keepdim=True)
    v = x.var(dim=axis, keepdim=True, unbiased=False)
    return (x - m) / torch.sqrt(v + eps)
def _scatter_add(tgt, idx, src, axis=0):
    return tgt.clone().index_add_(axis, idx, src)
def _segment_sum(src, seg, n):
    out = torch.zeros((n,) + src.shape[1:], dtype=src.dtype)
    return out.index_add_(0, seg, src)
def _pad(x, pw):
    flat = tuple(v for pair in reversed(pw) for v in pair)
    return torch.nn.functional.pad(x, flat)

kernel_name = 'sequential_preLN__compressed_kv_cla__mixer_channel_mlp__prompt'

def setup_inputs():

    _w = (lambda a: (lambda t: t.to(torch.bfloat16) if t.is_floating_point() else t)(torch.as_tensor(a)))
    def _A_setup():
        B, H, Sq, Sk, D, M = 1, 32, 2048, 2048, 128, 512
        Dc = 4 * D
        return {
            "x": _w((lambda *s: torch.randn(*s, dtype=torch.bfloat16) * 0.05)(B, Sq, M)),
            "c_kv": _w((lambda *s: torch.randn(*s, dtype=torch.bfloat16) * 0.4)(B, Sk, Dc)),
            "w_q": _w((lambda *s: torch.randn(*s, dtype=torch.bfloat16) * 3.2)(M, H, D) * (M ** -0.5)),
            "w_uk": _w((lambda *s: torch.randn(*s, dtype=torch.bfloat16) * 3.2)(Dc, H, D) * (Dc ** -0.5)),
            "w_uv": _w((lambda *s: torch.randn(*s, dtype=torch.bfloat16) * 0.4)(Dc, H, D) * (Dc ** -0.5)),
            "w_o": _w((lambda *s: torch.randn(*s, dtype=torch.bfloat16) * 0.4)(H, D, M) * ((H * D) ** -0.5)),
        }
    _A_in = _A_setup()

    def _B_setup():
        B, S, D, F = 1, 2048, 512, 1376
        return {
            "x": _w((lambda *s: torch.randn(*s, dtype=torch.bfloat16) * 0.05)(B, S, D)),
            "w1": _w((lambda *s: torch.randn(*s, dtype=torch.bfloat16) * 0.8)(D, F) * (D ** -0.5)),
            "b1": _w((lambda *s: torch.randn(*s, dtype=torch.bfloat16) * 0.4)(F)),
            "w2": _w((lambda *s: torch.randn(*s, dtype=torch.bfloat16) * 0.05)(F, D) * (F ** -0.5)),
            "b2": _w((lambda *s: torch.randn(*s, dtype=torch.bfloat16) * 0.05)(D)),
        }
    _B_in = _B_setup()

    return {
        "A_x": _A_in["x"],
        "A_c_kv": _A_in["c_kv"],
        "A_w_q": _A_in["w_q"],
        "A_w_uk": _A_in["w_uk"],
        "A_w_uv": _A_in["w_uv"],
        "A_w_o": _A_in["w_o"],
        "B_x": _B_in["x"],
        "B_w1": _B_in["w1"],
        "B_b1": _B_in["b1"],
        "B_w2": _B_in["w2"],
        "B_b2": _B_in["b2"],
    }

def reference(A_x, A_c_kv, A_w_q, A_w_uk, A_w_uv, A_w_o, B_x, B_w1, B_b1, B_w2, B_b2):
    def _A_ref(x, c_kv, w_q, w_uk, w_uv, w_o):
        B, Sq, M = x.shape[0], x.shape[1], x.shape[2]
        Sk = c_kv.shape[1]
        H, D = w_q.shape[1], w_q.shape[2]
        q = torch.einsum("bqm,mhd->bhqd", x, w_q)
        k = torch.einsum("bkc,chd->bhkd", c_kv, w_uk)
        v = torch.einsum("bkc,chd->bhkd", c_kv, w_uv)
        scores = torch.einsum("bhqd,bhkd->bhqk", q, k) * (D ** -0.5)
        off = Sk - Sq
        qi = torch.arange(Sq)[:, None]
        kj = torch.arange(Sk)[None, :]
        cmask = kj <= (qi + off)
        scores = torch.where(cmask[None, None], scores, -1e9)
        p = _softmax(scores, axis=-1)
        ctx = torch.einsum("bhqk,bhkd->bhqd", p, v)
        return torch.einsum("bhqd,hdm->bqm", ctx, w_o)

    def _B_ref(x, w1, b1, w2, b2):
        y = _layernorm(x, axis=-1)
        h = _gelu(torch.einsum("bsd,df->bsf", y, w1) + b1)
        return torch.einsum("bsf,fd->bsd", h, w2) + b2

    x = A_x
    h = x + _A_ref(_layernorm(x, axis=-1), A_c_kv, A_w_q, A_w_uk, A_w_uv, A_w_o)
    h2 = h + _B_ref(_layernorm(h, axis=-1), B_w1, B_b1, B_w2, B_b2)
    return h2
```

```python
NAME = "sequential_preLN__compressed_kv_cla__mixer_channel_mlp__prompt"

KA_X, KA_C, KA_WQ, KA_WUK, KA_WUV, KA_WO, KA_BX, KA_W1, KA_B1, KA_W2, KA_B2, KA_OUT, KA_DBG, KA_WS = [8 * i for i in range(14)]

WS_KV = 0
WS_XN = 32 << 20
WS_CTX = 36 << 20
WS_H = 52 << 20
WS_ST = 56 << 20
WS_HID = 60 << 20
WS_FLAG = 70 << 20
WS_BYTES = 256 << 20


def v(i, n=1): return f"v{i}" if n == 1 else f"v[{i}:{i+n-1}]"
def a(i, n=1): return f"a{i}" if n == 1 else f"a[{i}:{i+n-1}]"
def s(i, n=1): return f"s{i}" if n == 1 else f"s[{i}:{i+n-1}]"
def r(kind, i, n=1): return {"v": v, "a": a}[kind](i, n)


class Asm:
    def __init__(self):
        self.L = []
        self.uid = 0

    def e(self, line):
        if isinstance(line, (list, tuple)):
            for x in line: self.e(x)
        else:
            self.L.append(line)

    def label(self, name): self.L.append(name + ":")

    def newlabel(self, base):
        self.uid += 1
        return f"L_{base}_{self.uid}"

    def text(self): return "\n".join(("" if x.endswith(":") or x.startswith(".") else "  ") + x for x in self.L) + "\n"

    def srd(self, d, base, nbytes):
        self.e([f"s_mov_b32 s{d}, s{base}", f"s_mov_b32 s{d+1}, s{base+1}", f"s_mov_b32 s{d+2}, {nbytes:#x}", f"s_mov_b32 s{d+3}, 0x20000"])


def kind_of(ins):
    op = ins.split()[0]
    if op.startswith("s_"): return "s"
    if op.startswith("ds_") or op.startswith("buffer_") or op.startswith("global_"): return "m"
    return "v"


def weave(A, mfmas, gaps):
    for i, m in enumerate(mfmas):
        A.e(m)
        for x in gaps.get(i, []): A.e(x)


def add_gap(gaps, i, ins):
    gaps.setdefault(i, [])
    if isinstance(ins, (list, tuple)): gaps[i].extend(ins)
    else: gaps[i].append(ins)


def kernel_header(A, name):
    A.e([f".globl {name}", ".p2align 8", f".type {name},@function"])
    A.label(name)


def descriptor(name, nv=512, acc=256, ns=102):
    return f""".p2align 6
.amdhsa_kernel {name}
  .amdhsa_next_free_vgpr {nv}
  .amdhsa_next_free_sgpr {ns}
  .amdhsa_accum_offset {acc}
  .amdhsa_group_segment_fixed_size 0
  .amdhsa_kernarg_size 112
  .amdhsa_user_sgpr_count 2
  .amdhsa_user_sgpr_kernarg_segment_ptr 1
  .amdhsa_system_sgpr_workgroup_id_x 1
.end_amdhsa_kernel
"""


def wave_sum_multi(A, regs):
    steps = ["quad_perm:[1,0,3,2] row_mask:0xf bank_mask:0xf", "quad_perm:[2,3,0,1] row_mask:0xf bank_mask:0xf",
             "row_half_mirror row_mask:0xf bank_mask:0xf", "row_mirror row_mask:0xf bank_mask:0xf",
             "row_bcast:15 row_mask:0xa bank_mask:0xf", "row_bcast:31 row_mask:0xc bank_mask:0xf"]
    for st in steps:
        pad = 2 - (len(regs) - 1)
        if pad > 0: A.e(f"s_nop {pad-1}")
        for g in regs:
            A.e(f"v_add_f32_dpp v{g}, v{g}, v{g} {st}")


import os
STAMPS = bool(int(os.environ.get('STAMPS', '0')))
def STAMPS_ON(): return STAMPS
WS_STAMP = 250 << 20
STAMP_S0 = int(os.environ.get("STAMP_S0", 70))

def stamp(A, k):
    if not STAMPS: return
    A.e(["s_waitcnt lgkmcnt(0)", "s_memrealtime s[66:67]", "s_memtime s[68:69]", "s_waitcnt lgkmcnt(0)",
         f"s_mov_b32 s{STAMP_S0+2*k}, s66", f"s_mov_b32 s{STAMP_S0+2*k+1}, s68"])

def stamp_flush(A, kid, n, S_WS, sW):
    if not STAMPS: return
    A.e(["s_lshl_b32 s66, s2, 2", f"s_add_u32 s66, s66, s{sW}", "s_lshl_b32 s66, s66, 7", f"s_add_u32 s66, s66, {WS_STAMP + kid*131072}",
         "v_mov_b32 v0, 0"])
    for k in range(n):
        A.e([f"v_mov_b32 v2, s{STAMP_S0+2*k}", f"v_mov_b32 v3, s{STAMP_S0+2*k+1}",
             f"buffer_store_dwordx2 v[2:3], v0, s[{S_WS}:{S_WS+3}], s66 offen offset:{8*k}", "s_waitcnt vmcnt(0)"])


def gap_cost(lst):
    c = 0; seen_v = False; seen_m = False; n = 0
    for x in lst:
        if x.endswith(":"): continue
        op = x.split()[0]
        if op.startswith("s_"): c += 0 if n == 0 else 1
        elif op.startswith("ds_") or op.startswith("buffer_") or op.startswith("global_"):
            c += 1 if op.startswith("ds_") else 2
            if seen_v: c += 2
            elif seen_m: c += 1
            elif n and not op.startswith("ds_"): c += 1
            seen_m = True
        else:
            c += 2 if op in ("v_exp_f32", "v_rcp_f32", "v_rsq_f32", "v_log_f32") else 1
            seen_v = True
        n += 1
    return c


def schedule(gaps, ngaps, stream, level=5, closed=(), start=0, strict_tail=False, partial=False):
    import functools, sys
    sys.setrecursionlimit(100000)
    n = len(stream)
    base = {g: list(gaps.get(g, [])) for g in range(ngaps)}
    def bad_pair(x, y):
        if x.split()[0] not in ("v_exp_f32", "v_rcp_f32", "v_rsq_f32"): return False
        if y.split()[0] in ("v_exp_f32", "v_rcp_f32", "v_rsq_f32"): return False
        d = x.split()[1].rstrip(",")
        return d in [t.strip() for t in y.split(None, 1)[1].split(",")][1:]
    INF = 10 ** 9
    @functools.lru_cache(None)
    def best(g, k):
        if k == n: return (0, ())
        if g == ngaps: return (0, ()) if partial else (INF, ())
        if stream[k][2] < g: return (INF, ())
        if g in closed or g < start:
            c, pl = best(g + 1, k); return (c, (0,) + pl)
        b0 = max(0, gap_cost(base[g]) - level)
        res = (INF, ())
        cur = list(base[g]); opts = []
        m = 0
        while True:
            ov = max(0, gap_cost(cur) - level) - b0
            if partial and ov > 0: break
            if ov > 6: break
            opts.append((m, ov))
            if k + m >= n or stream[k + m][1] > g: break
            if m and bad_pair(stream[k + m - 1][0], stream[k + m][0]): break
            cur.append(stream[k + m][0]); m += 1
        for m, ov in reversed(opts):
            c, pl = best(g + 1, k + m)
            c += ov * (1000 + ov)
            if c < res[0]: res = (c, (m,) + pl)
            if partial: break
        return res
    c, pl = best(0, 0)
    assert c < INF, "unschedulable"
    k = 0
    for g, m in enumerate(pl):
        for _ in range(m): add_gap(gaps, g, stream[k][0]); k += 1


class VM:
    def __init__(self): self.q = []
    def issue(self, tag, n=1): self.q += [tag] * n
    def cnt(self, *tags):
        last = max(i for i, t in enumerate(self.q) if t in tags)
        return min(63, len(self.q) - 1 - last)


def cyc_waits(mf, gaps, positions, extra=None, force=None):
    import chk
    n = len(mf)
    seq = []
    for rep in range(2):
        for g in range(n):
            for x in gaps.get(g, []):
                if x.startswith("ds_read"): seq.append((rep * n + g, chk.regs(x.split()[1].rstrip(",")), x))
    pos = sorted(positions)
    for k, p in enumerate(pos):
        nxt = pos[k + 1] if k + 1 < len(pos) else pos[0] + n
        T = n + p
        issued = [q for q in seq if q[0] < T]
        last = -1
        for m in range(p + 1, nxt + 1):
            ops = [y.strip() for y in mf[m % n].split(None, 1)[1].split(", ")]
            need = chk.regs(ops[1]) | chk.regs(ops[2])
            allb = [q for q in seq if q[0] < n + m] if n + m <= 2 * n else seq + [(q[0] + 2 * n, q[1], q[2]) for q in seq if q[0] + 2 * n < n + m]
            c = [i for i, q in enumerate(allb) if q[1] & need]
            if c:
                assert c[-1] < len(issued), ("read issued after its covering wait", p, m, allb[c[-1]])
                last = max(last, c[-1])
        for i, q in enumerate(issued):
            if force and q[2] in force.get(p, ()): last = max(last, i)
        cnt = min(15, len(issued) - 1 - last)
        w = f"s_waitcnt lgkmcnt({cnt})"
        if extra and p in extra: w = f"s_waitcnt {extra[p]} lgkmcnt({cnt})"
        gaps.setdefault(p, []).insert(0, w)


def show_gaps(mf, g):
    ab = {'v_exp_f32': 'e', 'v_add_f32': 'a', 'v_cvt_pk_bf16_f32': 'c', 'ds_read_b128': 'd', 'ds_read_b64_tr_b16': 't', 'buffer_load_dwordx4': 'm',
          's_barrier': 'B', 's_waitcnt': 'w', 'buffer_store_dwordx4': 'S', 'v_accvgpr_read_b32': 'r'}
    out = []
    for i in range(len(mf)):
        out.append("".join(ab.get(x.split()[0], 's' if x.startswith('s_') else 'v') for x in g.get(i, [])) or ".")
    over = sum(max(0, gap_cost(g.get(i, [])) - 2) for i in range(len(mf)))
    return " ".join(out) + f"  | over={over}"
```

```python
import re, sys

TRANS = ("v_exp_f32", "v_log_f32", "v_rcp_f32", "v_rsq_f32", "v_sqrt_f32", "v_sin_f32", "v_cos_f32", "v_rcp_iflag_f32")
REG = re.compile(r"^(-|\|)?(abs\()?([vas])(\d+|\[(\d+):(\d+)\])\)?\|?$")


def regs(op):
    op = op.strip()
    if op in ("vcc",): return {("s", "vcc")}
    if op in ("vcc_lo", "vcc_hi"): return {("s", "vcc")}
    if op in ("exec", "exec_lo", "exec_hi"): return {("s", "exec")}
    if op == "m0": return {("s", "m0")}
    m = REG.match(op)
    if not m: return set()
    k = m.group(3)
    if m.group(5) is not None:
        return {(k, i) for i in range(int(m.group(5)), int(m.group(6)) + 1)}
    return {(k, int(m.group(4)))}


class I:
    __slots__ = ("txt", "op", "ops", "mods", "kind", "w", "r", "A", "B", "C", "passes", "ws", "line", "target", "async_w", "data", "dpp")


def parse(text):
    ins = []; labels = {}
    for ln, raw in enumerate(text.split("\n"), 1):
        s = raw.split(";")[0].split("//")[0].strip()
        if not s: continue
        m = re.match(r"^([A-Za-z_.$][\w.$]*):\s*(.*)$", s)
        if m:
            labels[m.group(1)] = len(ins); s = m.group(2).strip()
            if not s: continue
        if s.startswith("."): continue
        parts = s.split(None, 1)
        op = parts[0]
        for suf in ("_e32", "_e64", "_dpp", "_sdwa"):
            if op.endswith(suf): op = op[: -len(suf)]
        rest = parts[1] if len(parts) > 1 else ""
        ops = [x.strip() for x in re.split(r",(?![^\[]*\])", rest)] if rest else []
        mods = ""
        if ops:
            last = ops[-1].split(None, 1)
            if len(last) > 1 and not op.startswith("s_waitcnt"):
                ops[-1] = last[0]; mods = last[1]
        i = I(); i.txt = s; i.op = op; i.ops = ops; i.mods = mods; i.line = ln
        i.w = set(); i.r = set(); i.A = i.B = i.C = set(); i.passes = 0; i.ws = 1; i.target = None; i.async_w = set(); i.data = set()
        i.dpp = ("row_" in mods or "quad_perm" in mods or "wave_" in mods)
        R = lambda k: regs(ops[k]) if k < len(ops) else set()
        if op.startswith("v_mfma"):
            i.kind = "mfma"; i.w = R(0); i.A = R(1); i.B = R(2); i.C = R(3); i.r = i.A | i.B | i.C
            i.passes = 8 if "32x32" in op else 4
        elif op.startswith("ds_read") or op.startswith("ds_bpermute") or op.startswith("ds_permute") or op.startswith("ds_swizzle"):
            i.kind = "ds"; i.async_w = R(0); i.r = set().union(*[R(k) for k in range(1, len(ops))])
        elif op.startswith("ds_"):
            i.kind = "ds"
            if "_rtn" in op:
                i.async_w = R(0); i.r = set().union(*[R(k) for k in range(1, len(ops))])
            else:
                i.r = set().union(*[R(k) for k in range(len(ops))])
        elif op.startswith("buffer_load"):
            i.kind = "vm"
            if re.search(r"\blds\b", mods):
                i.r = R(0) | R(1) | R(2) | {("s", "m0")}
            else:
                i.async_w = R(0); i.r = R(1) | R(2) | R(3)
        elif op.startswith("buffer_store"):
            i.kind = "vm"; i.data = R(0); i.r = R(0) | R(1) | R(2) | R(3)
        elif op.startswith("buffer_atomic"):
            i.kind = "vm"; i.r = R(0) | R(1) | R(2) | R(3)
            if "sc0" in mods: i.async_w = R(0)
        elif op.startswith("buffer_wbl2") or op.startswith("buffer_inv"):
            i.kind = "vm"
        elif op.startswith("global_load_lds"):
            i.kind = "vm"; i.r = R(0) | R(1) | {("s", "m0")}
        elif op.startswith("global_load"):
            i.kind = "vm"; i.async_w = R(0); i.r = R(1) | R(2)
        elif op.startswith("global_store"):
            i.kind = "vm"; i.data = R(1); i.r = R(0) | R(1) | R(2)
        elif op.startswith("global_atomic"):
            i.kind = "vm"
            if "sc0" in mods: i.async_w = R(0); i.r = R(1) | R(2) | R(3)
            else: i.r = R(0) | R(1) | R(2)
        elif op.startswith("s_load") or op.startswith("s_buffer_load") or op in ("s_memtime", "s_memrealtime"):
            i.kind = "smem"; i.async_w = R(0); i.r = R(1) | R(2)
        elif op == "s_waitcnt":
            i.kind = "wait"
        elif op == "s_nop":
            i.kind = "nop"; i.ws = int(ops[0], 0) + 1
        elif op in ("s_barrier", "s_sleep", "s_setprio", "s_endpgm"):
            i.kind = op
        elif op.startswith("s_cbranch") or op == "s_branch":
            i.kind = "br"; i.target = ops[0]
            if "vcc" in op: i.r = {("s", "vcc")}
        elif op.startswith("s_cmp") or op.startswith("s_bitcmp"):
            i.kind = "salu"; i.r = R(0) | R(1)
        elif op.startswith("s_"):
            i.kind = "salu"; i.w = R(0); i.r = set().union(set(), *[R(k) for k in range(1, len(ops))])
            if "saveexec" in op: i.w = i.w | {("s", "exec")}
            if op in ("s_addk_i32", "s_mulk_i32", "s_cmov_b32") or op.startswith("s_bitset"): i.r |= R(0)
        elif op.startswith("v_"):
            i.kind = "valu"
            i.w = R(0); i.r = set().union(set(), *[R(k) for k in range(1, len(ops))])
            if op.startswith("v_permlane") and "swap" in op:
                i.w = R(0) | R(1); i.r = R(0) | R(1)
            elif op.startswith("v_swap"):
                i.w = R(0) | R(1); i.r = R(0) | R(1)
            elif op.startswith("v_fmac") or op.startswith("v_writelane") or op.startswith("v_dot2c") or i.dpp:
                i.r |= R(0)
            elif "_co_" in op or op.startswith("v_div_scale") or op.startswith("v_mad_u64"):
                i.w = R(0) | R(1); i.r = set().union(set(), *[R(k) for k in range(2, len(ops))])
            if op.startswith("v_cmpx"): i.w |= {("s", "exec")}
        else:
            raise ValueError(f"line {ln}: unknown op {op}")
        ins.append(i)
    return ins, labels


def succs(ins, labels, k):
    i = ins[k]
    if i.kind == "s_endpgm": return []
    if i.op == "s_branch": return [labels[i.target]]
    out = []
    if k + 1 < len(ins): out.append(k + 1)
    if i.kind == "br": out.append(labels[i.target])
    return out


def isv(S): return {x for x in S if x[0] in "va"}
def iss(S): return {x for x in S if x[0] == "s"}


def need(p, c):
    n = 0
    if p.kind == "valu":
        vw = isv(p.w); sw = iss(p.w)
        if c.kind == "mfma" and vw & c.r: n = max(n, 2)
        if c.kind == "valu":
            if p.op in TRANS and c.op not in TRANS and vw & c.r: n = max(n, 1)
            if c.op.startswith("v_permlane") and vw & c.r: n = max(n, 2)
            if c.dpp and vw & c.r: n = max(n, 2)
            if c.op.startswith("v_readlane") or c.op.startswith("v_readfirstlane"):
                if vw & c.r: n = max(n, 1)
            if (c.op.startswith("v_readlane") or c.op.startswith("v_writelane")) and sw & c.r: n = max(n, 4)
            if sw & c.r: n = max(n, 2)
            if ("s", "exec") in sw and (c.dpp): n = max(n, 5)
            if ("s", "exec") in sw and (c.op.startswith("v_read") or c.op.startswith("v_permlane")): n = max(n, 4)
        if p.op in TRANS and c.kind in ("vm", "ds") and vw & c.r: n = max(n, 1)
        if c.kind == "vm" and sw & c.r: n = max(n, 5)
        if c.kind == "mfma" and ("s", "exec") in sw: n = max(n, 4)
    if p.kind == "mfma":
        big = p.passes + 4
        if c.kind == "mfma":
            if p.w & (c.A | c.B): n = max(n, big)
            if p.w & c.C and not (p.w == c.C and p.passes == c.passes): n = max(n, p.passes + 2)
            if p.w & c.w and not (p.w == c.C) and not (p.w & c.C): n = max(n, p.passes + 2)
        elif c.kind == "valu":
            if p.w & (c.r | c.w): n = max(n, big)
            if p.C & c.w: n = max(n, p.passes - 1)
        elif c.kind in ("vm", "ds"):
            if p.w & (c.r | c.async_w): n = max(n, big)
            if p.C & c.async_w: n = max(n, p.passes - 1)
    if p.kind == "salu" and ("s", "m0") in p.w and c.kind == "vm" and ("s", "m0") in c.r: n = max(n, 1)
    if p.kind == "vm" and len(p.data) >= 3:
        if c.kind == "valu" and p.data & c.w: n = max(n, 2)
        elif (p.data & (c.w | c.async_w)): n = max(n, 1)
    return n


def check_hazards(ins, labels):
    errs = []
    for k, p in enumerate(ins):
        if p.kind not in ("valu", "mfma", "salu", "vm"): continue
        if p.kind == "salu" and ("s", "m0") not in p.w: continue
        if p.kind == "vm" and len(p.data) < 3: continue
        maxd = 12 if p.kind == "mfma" else 5
        seen = {}
        st = [(s, 0) for s in succs(ins, labels, k)]
        while st:
            j, d = st.pop()
            if d >= maxd or seen.get(j, 99) <= d: continue
            seen[j] = d
            c = ins[j]
            n = need(p, c)
            if n > d: errs.append(f"HAZARD need {n} have {d}: L{p.line} '{p.txt}' -> L{c.line} '{c.txt}'")
            for s in succs(ins, labels, j): st.append((s, d + c.ws))
    return errs


def parse_wait(i):
    t = i.txt
    m = re.search(r"vmcnt\((\d+)\)", t); vm = int(m.group(1)) if m else None
    m = re.search(r"lgkmcnt\((\d+)\)", t); lg = int(m.group(1)) if m else None
    return vm, lg


def check_waits(ins, labels, entries, maxstates=400000):
    errs = {}
    seen = set()
    st = [(e, (), ()) for e in entries]
    E = frozenset()
    leaders = set(labels.values())
    n = 0
    while st:
        k, vm, lg = st.pop()
        while True:
            if k in leaders:
                key = (k, vm, lg)
                if key in seen: break
                seen.add(key); n += 1
                if n > maxstates: return list(errs.values()) + ["TOO MANY STATES"]
            i = ins[k]
            touched = i.r | i.w | i.async_w
            for q, nm in ((vm, "vm"), (lg, "lgkm")):
                for ent in q:
                    rs = ent[1]
                    if rs & touched:
                        if nm == "vm" and i.kind == "vm" and not (rs & i.r): continue
                        if nm == "lgkm" and i.kind == "ds" and ent[0] == "d" and not (rs & i.r): continue
                        errs[(k, nm)] = f"WAIT({nm}) L{i.line} '{i.txt}' touches pending {sorted(rs & touched)[:4]}"
            if i.kind == "vm":
                vm = vm + (("v", frozenset(i.async_w)),)
                while vm and not vm[0][1]: vm = vm[1:]
                if len(vm) > 64: vm = vm[-64:]
            elif i.kind == "ds":
                lg = lg + (("d", frozenset(i.async_w)),)
                while lg and not lg[0][1]: lg = lg[1:]
                if len(lg) > 40: lg = lg[-40:]
            elif i.kind == "smem":
                lg = lg + (("s", frozenset(i.async_w)),)
            elif i.kind == "wait":
                a, b = parse_wait(i)
                if a is not None and len(vm) > a: vm = vm[len(vm) - a:] if a else ()
                if b is not None:
                    if b == 0: lg = ()
                    elif any(x[0] == "s" for x in lg): pass
                    elif len(lg) > b: lg = lg[len(lg) - b:]
                while vm and not vm[0][1]: vm = vm[1:]
                while lg and not lg[0][1]: lg = lg[1:]
            ss = succs(ins, labels, k)
            if not ss: break
            for s in ss[1:]: st.append((s, vm, lg))
            k = ss[0]
    return list(errs.values())


def check(text, entries):
    body = text.split(".section")[0]
    ins, labels = parse(body)
    errs = check_hazards(ins, labels)
    errs += check_waits(ins, labels, [labels[e] for e in entries])
    return errs, len(ins)


if __name__ == "__main__":
    t = open(sys.argv[1]).read()
    ents = re.findall(r"^\.amdhsa_kernel\s+(\S+)", t, re.M)
    errs, n = check(t, ents)
    print(n, "instructions;", len(errs), "problems")
    for e in errs[:60]: print(e)
```

```python
from asmlib import *
import copy

SLOT = 32768
RING = 5 * SLOT
MF = "v_mfma_f32_16x16x32_bf16"
NEG = "0xf149f2ca"
VERBOSE = False
SC1 = " sc1"
S_A, S_WS, S_B, S_C = 4, 8, 12, 16
sW, sH, sI = 20, 21, 22
sT, sT2, sT3 = 23, 24, 25
P_X, P_C, P_WQ, P_WUK, P_WUV, P_WO, P_BX, P_W1, P_B1, P_W2, P_B2, P_OUT, P_DBG, P_WS = [40 + 2 * i for i in range(14)]
vLIN = 2
F_KV1, F_KV2, F_CTX, F_H, F_HID = 0, 32, 64, 96, 128
SPIN = 1 << 17
CODE_LINES = 14
TOUCH_KV = int(os.environ.get('TOUCH_KV', 1))
TOUCH_XN = int(os.environ.get('TOUCH_XN', 1))

STAMP_NAMES = []
STAMP_SEL = os.environ.get("STSEL", "").split(",")
def stl(name):
    if not STAMPS_ON() or (STAMP_SEL != [""] and name not in STAMP_SEL): return []
    if name not in STAMP_NAMES: STAMP_NAMES.append(name)
    k = STAMP_NAMES.index(name); assert k < 15
    return ["s_waitcnt lgkmcnt(0)", "s_memrealtime s[68:69]", "s_memtime s[70:71]", "s_waitcnt lgkmcnt(0)",
            f"s_mov_b32 s{72+2*k}, s68", f"s_mov_b32 s{73+2*k}, s70"]
def st(A, name): A.e(stl(name))

def st_flush(A):
    if not STAMPS_ON(): return
    n = len(STAMP_NAMES); print('stamps:', list(enumerate(STAMP_NAMES)))
    A.e(["s_waitcnt vmcnt(0)", "s_lshl_b32 s68, s2, 2", f"s_add_u32 s68, s68, s{sW}", "s_lshl_b32 s68, s68, 7", f"s_add_u32 s68, s68, {WS_STAMP}", "v_mov_b32 v0, 0"])
    for k in range(n):
        A.e([f"v_mov_b32 v4, s{72+2*k}", f"v_mov_b32 v5, s{73+2*k}",
             f"buffer_store_dwordx2 v[4:5], v0, s[{S_WS}:{S_WS+3}], s68 offen offset:{8*k}", "s_waitcnt vmcnt(0)"])

class Slow:
    def __init__(self): self.items = []; self.items2 = []
    def check(self, A, vreg, srd, soff, target):
        Ls, Lb = A.newlabel("spin"), A.newlabel("back")
        self.items.append((Ls, Lb, vreg, srd, soff, target))
        return [f"v_readfirstlane_b32 s{sT3}, v{vreg}", f"s_cmp_lt_u32 s{sT3}, {target}", f"s_cbranch_scc1 {Ls}", Lb + ":"]
    def check2(self, A, vreg, vaddr, srd, target):
        Ls, Lb = A.newlabel("spin"), A.newlabel("back")
        self.items2.append((Ls, Lb, vreg, vaddr, srd, target))
        return [f"v_cmp_gt_u32 vcc, {target}, v{vreg}", f"s_cbranch_vccnz {Ls}", Lb + ":"]
    def emit(self, A):
        e = A.e
        for Ls, Lb, vreg, vaddr, srd, target in self.items2:
            A.label(Ls)
            e(f"s_mov_b32 s{sT3}, {SPIN}")
            A.label(Ls + "_l")
            e("s_sleep 1")
            e(f"buffer_load_dword v{vreg}, v{vaddr}, s[{srd}:{srd+3}], 0 offen sc1")
            e("s_waitcnt vmcnt(0)")
            e(f"v_cmp_gt_u32 vcc, {target}, v{vreg}"); e(f"s_cbranch_vccz {Lb}")
            e(f"s_sub_u32 s{sT3}, s{sT3}, 1"); e(f"s_cmp_lg_u32 s{sT3}, 0"); e(f"s_cbranch_scc1 {Ls}_l")
            e(f"s_branch {Lb}")
        for Ls, Lb, vreg, srd, soff, target in self.items:
            A.label(Ls)
            e(f"s_mov_b32 vcc_lo, {SPIN}")
            A.label(Ls + "_l")
            e("s_sleep 1")
            e(f"buffer_load_dword v{vreg}, off, s[{srd}:{srd+3}], s{soff} sc1")
            e("s_waitcnt vmcnt(0)")
            e(f"v_readfirstlane_b32 s{sT3}, v{vreg}")
            e(f"s_cmp_ge_u32 s{sT3}, {target}"); e(f"s_cbranch_scc1 {Lb}")
            e("s_sub_u32 vcc_lo, vcc_lo, 1"); e("s_cmp_lg_u32 vcc_lo, 0"); e(f"s_cbranch_scc1 {Ls}_l")
            e(f"s_branch {Lb}")

def signal(A, srd, soff, vone, wave=0):
    L = A.newlabel("nosig")
    return [f"s_cmp_lg_u32 s{sW}, {wave}", f"s_cbranch_scc1 {L}", f"v_mov_b32 v{vone}, 1", "s_mov_b64 exec, 1",
            f"buffer_atomic_add v{vone}, off, s[{srd}:{srd+3}], s{soff} sc1", "s_mov_b64 exec, -1", L + ":"]

def place_salu(g, ops, start, ngaps):
    gi = start
    for x in ops:
        while g.get(gi) and (g[gi][0].startswith("s_") or g[gi][0].startswith("buffer_")): gi += 1
        assert gi < ngaps, (x, gi)
        g.setdefault(gi, []).insert(0, x); gi += 1
    return gi

def place_vm(g, items, positions):
    assert len(positions) >= len(items)
    for (pre, m), p in zip(items, positions):
        assert not g.get(p), (p, g[p])
        add_gap(g, p, m)
        for j, x in enumerate(pre):
            L = g.setdefault(p - len(pre) + j, [])
            k = 0
            while k < len(L) and (L[k].startswith("s_") or L[k].startswith("buffer_")): k += 1
            L.insert(k, x)

def track_list(vm, L):
    for k, x in enumerate(L):
        if x.startswith("s_waitcnt WAITVM"):
            names = x[x.index("(") + 1:x.index(")")].split("|")
            L[k] = f"s_waitcnt vmcnt({vm.cnt(*names)})" + x[x.index(")") + 1:]
        elif (x.startswith("buffer_") or x.startswith("global_")) and not x.startswith("buffer_atomic"):
            vm.issue(x.split(";@")[1].strip() if ";@" in x else "other")
    return L

def track(vm, mf, g):
    for i in range(len(mf)): track_list(vm, g.get(i, []))

def phase_kv(A, vm, slow):
    e = A.e
    S_CC, S_W, S_X = S_A, S_B, S_C
    sGC, sGW, sMW, sBC, sBW, sKC, sKW, sRow, sX0 = 26, 27, 28, 29, 30, 31, 32, 35, 36
    sOUT, sQK = 33, 34
    vDC = (3, 4); vRC = (5, 6); vRW = list(range(7, 15)); vDW = (15, 16)
    FA = (128, 192)
    e(f"s_load_dwordx16 s[40:55], s[0:1], 0"); e(f"s_load_dwordx8 s[56:63], s[0:1], 64"); e(f"s_load_dwordx4 s[64:67], s[0:1], 96")
    e("s_getpc_b64 s[38:39]"); e(f"s_lshr_b32 s{sT}, s2, 3"); e(f"v_lshl_add_u32 v27, v0, 5, s{sT}"); e("v_lshlrev_b32 v27, 7, v27")
    e(f"v_cmp_gt_u32 vcc, {CODE_LINES}, v0"); e(f"s_and_saveexec_b64 s[{S_A}:{S_A+1}], vcc"); e("s_cbranch_execz L_nopf")
    e("global_load_dword v19, v27, s[38:39]")
    A.label("L_nopf")
    e("s_mov_b64 exec, -1")
    e("v_and_b32 v1, 63, v0"); e("v_lshrrev_b32 v20, 6, v0"); e(f"v_lshlrev_b32 v{vLIN}, 4, v1"); e(f"v_readfirstlane_b32 s{sW}, v20")
    e(f"s_and_b32 s{sH}, s2, 31"); e(f"s_lshr_b32 s{sI}, s2, 5")
    e("v_lshrrev_b32 v20, 3, v1"); e("v_lshlrev_b32 v20, 10, v20")
    e("v_and_b32 v21, 7, v1"); e("v_lshrrev_b32 v22, 4, v1"); e("v_xor_b32 v21, v21, v22")
    e(f"v_lshl_add_u32 v{vDC[0]}, v21, 4, v20"); e(f"v_xor_b32 v{vDC[1]}, 64, v{vDC[0]}")
    e(f"s_and_b32 s{sT}, s{sW}, 1"); e(f"s_lshl_b32 s{sBW}, s{sT}, 18"); e(f"s_lshl_b32 s{sT}, s{sT}, 2"); e(f"s_lshr_b32 s{sT2}, s{sW}, 1"); e(f"s_add_u32 s{sT}, s{sT}, s{sT2}")
    e(f"s_lshl_b32 s{sT}, s{sT}, 18"); e(f"s_lshl_b32 s{sBC}, s{sI}, 15"); e(f"s_add_u32 s{sBC}, s{sBC}, s{sT}")
    e(f"s_lshl_b32 s{sMW}, s{sW}, 13")
    e(f"s_mul_i32 s{sKC}, s{sH}, {ROT[0]}"); e(f"s_lshr_b32 s{sT}, s{sH}, 3"); e(f"s_mul_i32 s{sT}, s{sT}, {ROT[1]}"); e(f"s_add_u32 s{sKC}, s{sKC}, s{sT}")
    e(f"s_mul_i32 s{sT}, s{sI}, {ROT[2]}"); e(f"s_add_u32 s{sKC}, s{sKC}, s{sT}"); e(f"s_and_b32 s{sKC}, s{sKC}, 7")
    e(f"s_lshl_b32 s{sKW}, s{sKC}, 19"); e(f"s_lshl_b32 s{sKC}, s{sKC}, 7")
    e(f"s_lshl_b32 s{sT}, s2, 13"); e(f"s_lshl_b32 s{sT2}, s{sW}, 11"); e(f"s_add_u32 s{sT3}, s{sT}, s{sT2}")
    e("s_waitcnt lgkmcnt(0)")
    A.srd(S_X, P_X, 2 << 20)
    XR = 64
    e(f"buffer_load_dwordx4 {v(XR,4)}, v{vLIN}, s[{S_X}:{S_X+3}], s{sT3} offen")
    e(f"buffer_load_dwordx4 {v(XR+4,4)}, v{vLIN}, s[{S_X}:{S_X+3}], s{sT3} offen offset:1024"); vm.issue("x", 2)
    A.srd(S_CC, P_C, 2 << 20)

    def dma_stage(seq):
        m0 = (seq % 5) * SLOT
        if seq >= 16: kind, tag = "q", f"q{seq-16}"
        else: kind, tag = ("w" if seq & 1 else "c"), f"s{seq//2}"
        out = []
        for u in range(8):
            if kind == "c": sG, sB_, sK, vr, srd, step, mid, kinc, kmask = sGC, sBC, sKC, vDC[u & 1], S_CC, 7168, 488 * 1024 + 3072, 128, 1023
            elif kind == "w": sG, sB_, sK, vr, srd, step, mid, kinc, kmask = sGW, sBW, sKW, vDW[(u >> 1) & 1], S_W, 32768 - 1024, 32768 + 3072, 1 << 19, (4 << 20) - 1
            else: sG, sB_, sK, vr, srd, step, mid, kinc, kmask = sGC, sBC, sKC, vDW[(u >> 1) & 1], S_CC, 32768 - 1024, 32768 + 3072, 1 << 20, (4 << 20) - 1
            if u == 0: pre = [f"s_add_u32 m0, s{sMW}, {m0}", f"s_add_u32 s{sG}, s{sB_}, s{sK}"]
            elif u == 4: pre = [f"s_add_u32 m0, s{sMW}, {m0+4096}", f"s_add_u32 s{sG}, s{sG}, {mid}"]
            elif u == 1: pre = [f"s_add_u32 s{sK}, s{sK}, {kinc}", f"s_add_u32 s{sG}, s{sG}, {step}"]
            elif u == 2: pre = [f"s_and_b32 s{sK}, s{sK}, {kmask:#x}", f"s_add_u32 s{sG}, s{sG}, {step}"]
            else: pre = [f"s_add_u32 s{sG}, s{sG}, {step}"]
            off = f" offset:{(u % 4) * 1024}" if u % 4 else ""
            out.append((pre, f"buffer_load_dwordx4 v{vr}, s[{srd}:{srd+3}], s{sG} offen{off} lds ;@{tag}"))
        return out

    def emit_stages(lst, filler):
        items = sum([dma_stage(q) for q in lst], [])
        per = -(-len(filler) // len(items))
        for k, (pre, m) in enumerate(items):
            e(track_list(vm, pre + [m] + filler[k * per:(k + 1) * per]))

    B = Asm(); b = B.e
    b("v_lshlrev_b32 v20, 13, v22"); b("v_lshlrev_b32 v23, 2, v22"); b("v_and_b32 v21, 15, v1"); b("v_xor_b32 v23, v21, v23")
    b(f"v_lshl_add_u32 v{vDW[0]}, v23, 4, v20"); b(f"v_xor_b32 v{vDW[1]}, 32, v{vDW[0]}")
    b(f"s_lshl_b32 s{sT2}, s{sH}, 8"); b(f"s_add_u32 s{sBW}, s{sBW}, s{sT2}")
    b(f"s_mov_b32 s{S_W+2}, {4<<20:#x}"); b(f"s_mov_b32 s{S_W+3}, 0x20000")
    B.srd(S_WS, P_WS, WS_BYTES)
    emit_stages([0], B.L)
    e(f"s_cmp_lt_u32 s{sW}, 2"); e(f"s_cselect_b32 s{S_W}, s{P_WUK}, s{P_WUV}"); e(f"s_cselect_b32 s{S_W+1}, s{P_WUK+1}, s{P_WUV+1}")
    B = Asm(); b = B.e
    b(f"s_and_b32 s{sT3}, s{sW}, 1"); b(f"s_lshl_b32 s{sT3}, s{sT3}, 14")
    b("v_lshrrev_b32 v24, 1, v21"); b("v_xor_b32 v24, v24, v22"); b("v_lshlrev_b32 v24, 4, v24")
    b("v_lshl_add_u32 v24, v21, 7, v24"); b(f"v_add_u32 v{vRC[0]}, s{sT3}, v24"); b(f"v_xor_b32 v{vRC[1]}, 64, v{vRC[0]}")
    b("v_lshrrev_b32 v24, 2, v21"); b("v_lshl_add_u32 v25, v22, 3, v24")
    b("v_lshlrev_b32 v24, 2, v24"); b("v_and_b32 v26, 1, v22"); b("v_lshl_add_u32 v24, v26, 1, v24")
    b("v_bfe_u32 v26, v21, 1, 1"); b("v_xor_b32 v24, v24, v26"); b("v_lshlrev_b32 v24, 4, v24")
    b("v_lshl_add_u32 v24, v25, 8, v24"); b("v_and_b32 v26, 1, v21"); b("v_lshl_add_u32 v24, v26, 3, v24")
    b(f"s_lshr_b32 s{sT3}, s{sW}, 1"); b(f"s_lshl_b32 s{sT3}, s{sT3}, 14")
    b(f"v_add_u32 v{vRW[0]}, s{sT3}, v24")
    for ct in range(1, 8): b(f"v_xor_b32 v{vRW[ct]}, {ct*32}, v{vRW[0]}")
    emit_stages([1], B.L)
    st(A, "iss0")
    B = Asm(); b = B.e
    b("s_waitcnt WAITVM(x)")
    D0 = 72; R0 = 88
    for rr in range(2):
        for k in range(4):
            b(f"v_lshlrev_b32 v{D0+8*rr+2*k}, 16, v{XR+4*rr+k}"); b(f"v_and_b32 v{D0+8*rr+2*k+1}, 0xffff0000, v{XR+4*rr+k}")
    for rr in range(2):
        d = D0 + 8 * rr
        for k in range(2): b(f"v_pk_add_f32 {v(R0+4+2*k,2)}, {v(d+4*k,2)}, {v(d+4*k+2,2)}")
        b(f"v_pk_add_f32 {v(R0+4,2)}, {v(R0+4,2)}, {v(R0+6,2)}"); b(f"v_add_f32 v{R0+rr}, v{R0+4}, v{R0+5}")
    wave_sum_multi(B, [R0, R0 + 1])
    b(f"v_mov_b32 v{R0+2}, 0xbb000000"); b(f"v_readlane_b32 s38, v{R0}, 63"); b(f"v_readlane_b32 s39, v{R0+1}, 63")
    b("s_nop 0")
    for rr in range(2):
        for k in range(8): b(f"v_fma_f32 v{D0+8*rr+k}, s{38+rr}, v{R0+2}, v{D0+8*rr+k}")
    for rr in range(2):
        d = D0 + 8 * rr
        b(f"v_pk_mul_f32 {v(R0+4,2)}, {v(d,2)}, {v(d,2)}")
        for k in range(1, 4): b(f"v_pk_fma_f32 {v(R0+4,2)}, {v(d+2*k,2)}, {v(d+2*k,2)}, {v(R0+4,2)}")
        b(f"v_add_f32 v{R0+rr}, v{R0+4}, v{R0+5}")
    wave_sum_multi(B, [R0, R0 + 1])
    b(f"v_mov_b32 v{R0+2}, 0x3b000000"); b(f"v_readlane_b32 s38, v{R0}, 63"); b(f"v_readlane_b32 s39, v{R0+1}, 63")
    b(f"v_mov_b32 v{R0+3}, 0x3727c5ac")
    b(f"v_fma_f32 v{R0}, s38, v{R0+2}, v{R0+3}"); b(f"v_fma_f32 v{R0+1}, s39, v{R0+2}, v{R0+3}")
    b(f"v_rsq_f32 v{R0}, v{R0}"); b(f"v_rsq_f32 v{R0+1}, v{R0+1}"); b("v_lshlrev_b32 v20, 13, v22")
    b(f"v_mul_f32 v{R0}, 0x3e0293ee, v{R0}"); b(f"v_mul_f32 v{R0+2}, 0x3e0293ee, v{R0+1}")
    for rr in range(2):
        d = D0 + 8 * rr
        for k in range(4): b(f"v_pk_mul_f32 {v(d+2*k,2)}, {v(d+2*k,2)}, {v(R0+2*rr,2)} op_sel_hi:[1,0]")
        for k in range(4): b(f"v_cvt_pk_bf16_f32 v{XR+4*rr+k}, v{d+2*k}, v{d+2*k+1}")
    b("v_lshl_add_u32 v20, v21, 7, v20"); b(f"s_lshl_b32 s{sT3}, s{sW}, 5"); b(f"s_add_u32 s{sT3}, s{sT3}, {4*SLOT}"); b(f"v_add_u32 v20, s{sT3}, v20")
    b(f"ds_write_b128 v20, {v(XR,4)}"); b(f"ds_write_b128 v20, {v(XR+4,4)} offset:16")
    b(f"s_add_u32 s{sT3}, s{sMW}, {4*SLOT}"); b(f"v_add_u32 v23, s{sT3}, v{vLIN}")
    b("v_lshrrev_b32 v24, 3, v1"); b("v_and_b32 v25, 7, v1"); b("v_lshlrev_b32 v25, 4, v25"); b("v_lshl_add_u32 v24, v24, 8, v25")
    b(f"s_lshr_b32 s{sRow}, s2, 1"); b(f"s_lshl_b32 s{sRow}, s{sRow}, 14"); b(f"s_and_b32 s{sT3}, s2, 1"); b(f"s_lshl_b32 s{sT3}, s{sT3}, 7"); b(f"s_add_u32 s{sRow}, s{sRow}, s{sT3}")
    b(f"s_lshl_b32 s{sT3}, s{sW}, 12"); b(f"s_add_u32 s{sRow}, s{sRow}, s{sT3}"); b(f"s_add_u32 s{sRow}, s{sRow}, {WS_XN}")
    B.srd(S_X, P_DBG, 256)
    if LN_FIRST:
        e(track_list(vm, B.L)); emit_stages([2, 3], [])
    else:
        emit_stages([2, 3], B.L)
    e(f"s_waitcnt vmcnt({vm.cnt('s0')}) lgkmcnt(0)"); e("s_barrier")
    e(f"ds_read_b128 {v(XR,4)}, v23"); e(f"ds_read_b128 {v(XR+4,4)}, v23 offset:1024")
    st(A, "kv0")
    e(f"s_cmp_ge_u32 s{sW}, 2"); e("s_cbranch_scc1 L_kv_v")

    def cwin(n): return ((2 * n) % 5) // 2
    def wwin(n): return ((2 * n + 1) % 5) // 2
    def reads(hs):
        n, ks = hs // 2, hs % 2
        cb, wb = FA[ks], FA[ks] + 32
        co = (((2 * n) % 5) % 2) * SLOT; wo = (((2 * n + 1) % 5) % 2) * SLOT
        out = []
        for i in range(8):
            out.append(f"ds_read_b128 {v(cb+4*i,4)}, v{vRC[ks]} offset:{co + i*2048}")
            out += [f"ds_read_b64_tr_b16 {v(wb+4*i+2*hf,2)}, v{vRW[i]} offset:{wo + ks*8192 + hf*1024}" for hf in range(2)]
        return out
    def acc(isV, i, j):
        if isV: return 8 * (8 * (i >> 1) + j) + 4 * (i & 1)
        return 8 * (8 * (j >> 1) + 4 * (j & 1) + (i >> 1)) + 4 * (i & 1)
    def mfmas(hs, isV):
        cb, wb = FA[hs % 2], FA[hs % 2] + 32
        ab, bb = (cb, wb) if isV else (wb, cb)
        order = [(i, j if i % 2 == 0 else 7 - j) for i in range(8) for j in range(8)]
        if hs == 15: order = sorted(order, key=lambda t: acc(isV, *t))
        return [f"{MF} {a(acc(isV,i,j),4)}, {v(ab+4*i,4)}, {v(bb+4*j,4)}, {a(acc(isV,i,j),4) if hs else '0'}" for (i, j) in order]

    Q = dict(vRW=vRW, sX0=sX0, sOUT=sOUT, sQK=sQK)
    vm0 = vm
    for isV in (0, 1):
        vm = copy.deepcopy(vm0)
        if isV: A.label("L_kv_v")
        pro = reads(0) + ["s_waitcnt lgkmcnt(15)",
                          f"buffer_store_dwordx4 {v(XR,4)}, v24, s[{S_WS}:{S_WS+3}], s{sRow} offen{SC1} ;@ln",
                          f"buffer_store_dwordx4 {v(XR+4,4)}, v24, s[{S_WS}:{S_WS+3}], s{sRow} offen offset:2048{SC1} ;@ln",
                          "v_mov_b32 v20, 0", f"s_lshl_b32 s{sT3}, s2, 7", f"s_add_u32 s{sT3}, s{sT3}, {WS_FLAG}", "s_mov_b64 exec, 1",
                          f"buffer_store_dword v20, off, s[{S_WS}:{S_WS+3}], s{sT3}{SC1} ;@ln", "s_mov_b64 exec, -1",
                          f"s_and_b32 s{sRow}, s{sH}, 1", f"s_lshl_b32 s{sRow}, s{sRow}, 7", "s_waitcnt lgkmcnt(0)"]
        e(track_list(vm, pro))
        xl = sum([xn_loads(Q, k) for k in range(4)], [])
        for hs in range(16):
            n = hs // 2
            g = {}
            if hs < 15:
                rd = reads(hs + 1)
                for u in range(8):
                    for k in range(3): add_gap(g, 6 * u + k, rd[3 * u + k])
                place_vm(g, dma_stage(hs + 4), [6 * u + 5 for u in range(8)])
                if hs % 2 == 1: add_gap(g, 63, "s_waitcnt lgkmcnt(0)")
                else: add_gap(g, 63, [f"s_waitcnt WAITVM({'s%d' % (n+1) if n < 7 else 'q0'}{'|ln' if hs == 2 else ''}) lgkmcnt(0)", "s_barrier"])
            if hs % 2 == 0 and n < 7:
                dc = (cwin(n + 1) - cwin(n)) * 2 * SLOT; dw = (wwin(n + 1) - wwin(n)) * 2 * SLOT
                vl = ([f"v_add_u32 v{x}, {dc & 0xffffffff:#x}, v{x}" for x in vRC] if dc else []) + ([f"v_add_u32 v{x}, {dw & 0xffffffff:#x}, v{x}" for x in vRW] if dw else [])
                for i, y in enumerate(vl): add_gap(g, 48 + 2 * (i // 2), y)
            if hs == 14:
                for i, x_ in enumerate(vRW): add_gap(g, 48 + 2 * (i // 2), f"v_add_u32 v{x_}, s{sBW}, v{x_}")
            if hs in (3, 4) and not isV:
                L = A.newlabel("s0")
                add_gap(g, 50, [f"s_bitcmp{hs&1}_b32 s{sI}, 0", f"s_cbranch_scc1 {L}"] + signal(A, S_C, sRow, 20) + [L + ":"])
            if hs == 1 and TOUCH_WQ:
                place_salu(g, [f"s_lshl_b32 s{sT}, s{sW}, 20", f"s_lshl_b32 s{sT2}, s{sI}, 13", f"s_add_u32 s{sT}, s{sT}, s{sT2}", f"s_lshl_b32 s{sT2}, s{sH}, 8", f"s_add_u32 s{sT}, s{sT}, s{sT2}"], 48, 60)
                for i, y in enumerate(["v_lshrrev_b32 v20, 1, v1", "v_and_b32 v21, 1, v1", "v_and_b32 v20, 15, v20", "v_lshlrev_b32 v20, 16, v20", "v_lshl_add_u32 v20, v21, 7, v20", f"v_add_u32 v20, s{sT}, v20"]): add_gap(g, 49 + i, y)
                add_gap(g, 56, f"global_load_dword v19, v20, s[{P_WQ}:{P_WQ+1}]")
            if hs == 6:
                add_gap(g, 58, ["v_and_b32 v21, 1, v1", "v_lshlrev_b32 v21, 7, v21"])
                add_gap(g, 60, f"buffer_load_dword v19, v21, s[{S_C}:{S_C+3}], 0 offen sc1 ;@f0")
            if hs == 7:
                place_salu(g, [f"s_lshl_b32 s{sT}, s{sI}, 2", f"s_add_u32 s{sT}, s{sT}, s{sW}", f"s_sub_u32 s{sT2}, 63, s{sT}", f"s_lshl_b32 s{sT}, s{sT}, 15", f"s_lshl_b32 s{sT2}, s{sT2}, 15",
                               f"s_add_u32 s{sX0}, s{sT}, {WS_XN}", f"s_add_u32 s{sX0+1}, s{sT}, {WS_XN+16384}", f"s_add_u32 s{sX0+2}, s{sT2}, {WS_XN}", f"s_add_u32 s{sX0+3}, s{sT2}, {WS_XN+16384}",
                               f"s_lshr_b32 s{sQK}, s{sH}, 3", f"s_mul_i32 s{sQK}, s{sQK}, {ROTQ*4096}"], 48, 60)
                add_gap(g, 60, f"v_add_u32 v{vXO}, s{sQK}, v{vLIN}")
                add_gap(g, 61, ["s_waitcnt WAITVM(f0)"] + slow.check2(A, 19, 21, S_C, 128))
            if 8 <= hs <= 13:
                k0 = (hs - 8) * 16 // 6; k1 = (hs - 7) * 16 // 6
                place_vm(g, xl[k0:k1], [51, 55, 59])
            if hs == 11:
                place_salu(g, [f"s_mov_b32 s{S_CC}, s{P_WQ}", f"s_mov_b32 s{S_CC+1}, s{P_WQ+1}", f"s_mov_b32 s{S_CC+2}, {4<<20:#x}", f"s_lshl_b32 s{sBC}, s{sW}, 18", f"s_lshl_b32 s{sT}, s{sH}, 8",
                               f"s_add_u32 s{sBC}, s{sBC}, s{sT}", f"s_lshl_b32 s{sKC}, s{sQK}, 8"], 48, 63)
            if hs == 13:
                place_salu(g, [f"s_lshr_b32 s{sT}, s{sW}, 1", f"s_lshl_b32 s{sT}, s{sT}, 14", f"s_sub_u32 s{sBW}, {SLOT}, s{sT}",
                               f"s_lshl_b32 s{sOUT}, s{sH}, 20", f"s_lshl_b32 s{sT}, s{sI}, 14", f"s_add_u32 s{sOUT}, s{sOUT}, s{sT}", f"s_and_b32 s{sT}, s{sW}, 1",
                               f"s_lshl_b32 s{sT}, s{sT}, 17", f"s_add_u32 s{sOUT}, s{sOUT}, s{sT}"] + ([f"s_add_u32 s{sOUT}, s{sOUT}, 8192"] if isV else []), 48, 63)
            if hs == 15:
                place_vm(g, dma_stage(19), [2 + 4 * u for u in range(8)])
                for i, x_ in enumerate(sum(wreads(Q, 0)[:7], [])): add_gap(g, 33 + 2 * i, x_)
                schedule(g, 64, [(x_[0], 2 * x_[1] + 8, 62) for x_ in drain_stream(Q, 0, NEARLY)], level=2)
                add_gap(g, 63, "s_waitcnt WAITVM(x0) lgkmcnt(6)")
            if hs in (2, 6, 10, 14): add_gap(g, 63, stl(f"hs{hs}"))
            mf = mfmas(hs, isV); track(vm, mf, g)
            if VERBOSE and not isV: print("kv", hs, show_gaps(mf, g))
            weave(A, mf, g)
        if not isV: e("s_branch L_q")
    A.label("L_q")
    return vm, Q

ROT = [int(x) for x in os.environ.get("ROT", "1,0,0").split(",")]
ROTQ = int(os.environ.get("ROTQ", 1))
LN_FIRST = int(os.environ.get("LN_FIRST", 0))
TOUCH_WQ = int(os.environ.get("TOUCH_WQ", 1))
vXO = 17
EXP = os.environ.get('EXP', '')
WF = 32; XQ = 64; QA = 128; DT = 20
NEARLY = 4
def xreg(ks, q): return v(XQ + 16 * ks + 4 * q, 4) if ks < 4 else a(16 * (ks - 4) + 4 * q, 4)
def xn_loads(Q, ks):
    return [([], f"buffer_load_dwordx4 {xreg(ks,q)}, v{vXO}, s[{S_WS}:{S_WS+3}], s{Q['sX0']+q} offen" + (f" offset:{(ks%4)*1024}" if ks % 4 else "") + SC1 + f" ;@x{ks}") for q in range(1 if EXP == "noxn" and ks > 3 else 4)]
def wreads(Q, ks):
    s_, k = ks // 4, ks % 4
    return [[f"ds_read_b64_tr_b16 {v(WF+4*dt+2*hf,2)}, v{Q['vRW'][dt]} offset:{(s_%2)*SLOT + k*8192 + hf*1024}" for hf in range(2)] for dt in range(8)]
def drain_stream(Q, lo, hi):
    out = []
    for n in range(lo, hi):
        pk = DT + 4 + 4 * (n % 2)
        for k in range(4):
            t = DT + 2 * (k % 2)
            out += [(f"v_accvgpr_read_b32 v{t}, a{8*n+2*k}", n), (f"v_accvgpr_read_b32 v{t+1}, a{8*n+2*k+1}", n), (f"v_cvt_pk_bf16_f32 v{pk+k}, v{t}, v{t+1}", n)]
            if k == 0 and n and n % 4 == 0:
                out.append((f"s_add_u32 s{Q['sOUT']}, s{Q['sOUT']}, {4096 if n % 8 else 262144 - 4096}", n))
        if EXP == "nostore" and n % 8 != 7: continue
        out.append((f"buffer_store_dwordx4 {v(pk,4)}, v{vLIN}, s[{S_WS}:{S_WS+3}], s{Q['sOUT']} offen" + (f" offset:{(n%4)*1024}" if n % 4 else "") + ("" if EXP == "plain" else SC1) + f" ;@st{n//8}", n))
    return out

vKAD, vVAD = 3, 4
vX = (5, 6, 15, 16)
vTRI = 8
vFL = 19
vTMP = 20
vS = {"A": 32, "B": 48}
vP = {"A": 112, "B": 120}
vQ = {"A": 64, "B": 192}
vC = {"A": (128, 144), "B": (160, 176)}
vE = 224
aO = {"A": 0, "B": 64}
aK, aV = 128, 160
aL = {"A": 192, "B": 200}
aONE = 208
S_KV = S_B
sG, sM, sR, sN, sF, sNS = 29, 30, 31, 32, 26, 27
sNA, sNB, sRBA, sRBB, sEV, sI1, sI2 = 42, 43, 44, 45, 46, 48, 49
sBAD = 36

def dma_ops(tag="kv"):
    out = []
    for u in range(8):
        pre = []
        if u == 0: pre = [f"s_mov_b32 m0, s{sM}"]
        if u == 4: pre = [f"s_add_u32 m0, s{sM}, 4096", f"s_add_u32 s{sG}, s{sG}, s{sI1}"]
        off = f" offset:{(u%4)*1024}" if u % 4 else ""
        out.append((pre, f"buffer_load_dwordx4 v{vX[u%4]}, s[{S_KV}:{S_KV+3}], s{sG} offen{off}{SC1} lds ;@{tag}"))
    tail = [f"s_add_u32 s{sG}, s{sG}, s{sI2}", f"s_add_u32 s{sM}, s{sM}, {SLOT}",
            f"s_cmp_ge_u32 s{sM}, {RING}", f"s_cselect_b32 s{sT}, {RING}, 0", f"s_sub_u32 s{sM}, s{sM}, s{sT}"]
    return out, tail

def phase_q(A, vm, slow, Q):
    e = A.e
    mf = []; g = {}
    for ks in range(16):
        o = 32 * ks
        mf += [f"{MF} {v(QA+32*q+4*dt,4)}, {v(WF+4*dt,4)}, {xreg(ks,q)}, {v(QA+32*q+4*dt,4) if ks else '0'}" for dt in range(8) for q in (range(4) if dt % 2 == 0 else range(3, -1, -1))]
        cur = wreads(Q, ks)
        add_gap(g, o, cur[7][0]); add_gap(g, o + 1, cur[7][1])
        if ks < 15:
            nx = wreads(Q, ks + 1)
            for dt in range(7): add_gap(g, o + 4 * dt + 4, nx[dt][0]); add_gap(g, o + 4 * dt + 5, nx[dt][1])
            add_gap(g, o + 14, "s_waitcnt lgkmcnt(6)")
            add_gap(g, o + 30, f"s_waitcnt WAITVM(x{ks+1}) lgkmcnt(6)")
        else:
            add_gap(g, o + 14, "s_waitcnt lgkmcnt(0)")
    closed = set()
    for ks in (3, 7, 11):
        o = 32 * ks
        add_gap(g, o + 2, [f"s_waitcnt WAITVM(q{ks//4+1}" + ("|st0)" if ks == 7 else ")"), "s_barrier"]); closed.add(o + 2)
    for ks in range(12):
        o = 32 * ks
        place_vm(g, xn_loads(Q, ks + 4), [o + 7, o + 15, o + 23, o + 31])
        if ks % 4 == 0:
            place_salu(g, [f"s_add_u32 s{Q['sQK']}, s{Q['sQK']}, 4096", f"s_and_b32 s{Q['sQK']}, s{Q['sQK']}, 0x3fff"], o, o + 4)
            add_gap(g, o + 4, f"v_add_u32 v{vXO}, s{Q['sQK']}, v{vLIN}")
    add_gap(g, 32 * 7 + 3, signal(A, S_WS, sF, vFL)); closed.add(32 * 7 + 3)
    add_gap(g, 32 * 10 + 3, f"buffer_load_dword v{vFL}, off, s[{S_WS}:{S_WS+3}], s{sF} sc1 ;@f1")
    add_gap(g, 32 * 12 + 2, ["s_waitcnt WAITVM(f1)"] + slow.check(A, vFL, S_WS, sF, 8)); closed.add(32 * 12 + 2)
    for n in range(3):
        o = 32 * (12 + n) + 4
        d, tail = dma_ops(f"kv{n}")
        place_vm(g, d, [o + 3 + 4 * u for u in range(8)])
        for x in tail[:2]: add_gap(g, o + 31, x)
    setup = [f"s_lshl_b32 s{sF}, s{sH}, 7", f"s_add_u32 s{sF}, s{sF}, {WS_FLAG + F_KV1*128}",
             f"s_mov_b32 s{S_KV}, s{P_WS}", f"s_mov_b32 s{S_KV+1}, s{P_WS+1}", f"s_mov_b32 s{S_KV+2}, {32<<20:#x}",
             f"s_lshl_b32 s{sM}, s{sW}, 13", f"s_lshl_b32 s{sG}, s{sH}, 20", f"s_add_u32 s{sG}, s{sG}, s{sM}", f"s_movk_i32 s{sI1}, 4096", f"s_movk_i32 s{sI2}, {SLOT-4096}",
             f"s_lshl_b32 s{sRBA}, s{sI}, 2", f"s_add_u32 s{sRBA}, s{sRBA}, s{sW}", f"s_sub_u32 s{sRBB}, 63, s{sRBA}",
             f"s_lshr_b32 s{sNA}, s{sRBA}, 1", f"s_lshr_b32 s{sNB}, s{sRBB}, 1", f"s_lshl_b32 s{sT}, s{sI}, 1", f"s_sub_u32 s{sNS}, 28, s{sT}",
             f"s_mov_b64 s[{sEV}:{sEV+1}], 20", f"s_bitset1_b64 s[{sEV}:{sEV+1}], s{sNA}", f"s_bitset1_b64 s[{sEV}:{sEV+1}], s{sNB}", f"s_bitset1_b64 s[{sEV}:{sEV+1}], s{sNS}",
             f"s_add_u32 s{sNA}, s{sNA}, 1", f"s_add_u32 s{sNB}, s{sNB}, 1", f"s_bitset1_b64 s[{sEV}:{sEV+1}], s{sNA}", f"s_bitset1_b64 s[{sEV}:{sEV+1}], s{sNB}",
             f"s_mov_b32 s{sR}, 0", f"s_mov_b32 s{sN}, 0"]
    place_salu(g, setup, 32, 32 * 7)
    stream = []
    dr = drain_stream(Q, NEARLY, 32)
    for x, n in dr:
        lo = int((n - NEARLY) * DRAIN_PACE)
        hi = 32 * (n // 2) + 6 + 16 * (n % 2) if n < 24 and x.startswith("v_acc") else 32 * 13
        stream.append((x, lo, hi))
    upd = [(f"v_add_u32 v{Q['vRW'][dt]}, {2*SLOT}, v{Q['vRW'][dt]}", dt) for dt in range(8)]
    for x, dt in upd: add_gap(g, 32 * 7 + (1 if dt in (0, 7) else 4 * dt + 1), x)
    for k in range(4): add_gap(g, 32 * 11 + 4 + 4 * k, f"v_mov_b32 v{vX[k]}, v{vLIN}")
    schedule(g, 32 * 13 + 1, stream, level=2, closed=closed)
    late = [f"v_mov_b32 v{vKAD}, v{vLIN}", f"v_mov_b32 v{vVAD}, v{vLIN}", "v_mov_b32 v26, 0x3f803f80", "v_and_b32 v21, 15, v1", "v_lshrrev_b32 v22, 4, v1",
            "v_lshlrev_b32 v24, 2, v22", "v_sub_u32 v24, v21, v24", f"v_mov_b32 v25, {NEG}"] + [f"v_accvgpr_write_b32 a{aONE+k}, v26" for k in range(4)]
    schedule(g, 32 * 15, [(x, 32 * 13 + 8, 32 * 15 - 1) for x in late], level=2, closed=closed)
    late = []
    for i in range(4): late += [f"v_cmp_gt_i32 vcc, {i}, v24", "s_nop 1", f"v_cndmask_b32 v{vTRI+i}, 0, v25, vcc"]
    schedule(g, 512, [(x, 32 * 15 + 6, 511) for x in late], level=2, closed=closed)
    for ks in (3, 7, 11, 12): add_gap(g, 32 * ks + 2, stl(f"q{ks}"))
    track(vm, mf, g)
    if VERBOSE:
        for ks in range(16): print("q", ks, show_gaps(mf[:32], {k - 32 * ks: x for k, x in g.items() if 32 * ks <= k < 32 * ks + 32}))
    weave(A, mf, g)
DRAIN_PACE = float(os.environ.get('PACE', 13.5))

def qk(sub, S, C):
    out = []
    for qt in range(2):
        for kt in range(2):
            d = S + (qt * 2 + kt) * 4
            for u in range(4):
                c = v(d, 4) if u else (C if isinstance(C, str) else v(C + (qt * 2 + kt) * 4, 4))
                out.append(f"{MF} {v(d,4)}, {a(aK+16*kt+4*u,4)}, {v(vQ[sub]+16*qt+4*u,4)}, {c}")
    return out

def pv(sub, P, first=False):
    out = []
    for qt in range(2):
        for dt in range(8):
            o = a(aO[sub] + 32 * qt + 4 * dt, 4)
            out.append(f"{MF} {o}, {a(aV+4*dt,4)}, {v(P+4*qt,4)}, {'0' if first else o}")
        o = a(aL[sub] + 4 * qt, 4)
        out.append(f"{MF} {o}, {a(aONE,4)}, {v(P+4*qt,4)}, {'0' if first else o}")
    return out

def kread(tile): return [f"ds_read_b128 {a(aK+4*f,4)}, v{vKAD} offset:{tile*16384 + f*1024}" for f in range(8)]
def vread(tile): return [f"ds_read_b128 {a(aV+4*f,4)}, v{vVAD} offset:{tile*16384 + 8192 + f*1024}" for f in range(8)]

def softmax(S, P, lo=0, hi=16):
    out = []; pend = []
    T = lambda j: vTMP + (j % 6)
    for j in range(lo, hi):
        out.append((f"v_exp_f32 v{T(j)}, v{S+j}", "e", j))
        out += pend; pend = []
        if j % 2: pend.append((f"v_cvt_pk_bf16_f32 v{P+j//2}, v{T(j-1)}, v{T(j)}", "c", j))
    return out, pend

def sm_flat(S, P, lo=0, hi=16):
    o, p = softmax(S, P, lo, hi)
    return [x[0] for x in o] + ["s_nop 0"] + [x[0] for x in p]

def ring_adv():
    return [f"s_add_u32 s{sR}, s{sR}, {SLOT}", f"s_cmp_ge_u32 s{sR}, {RING}", f"s_cselect_b32 s{sT2}, {RING}, 0", f"s_sub_u32 s{sR}, s{sR}, s{sT2}"]
def stage_ctl(): return [f"s_add_u32 s{sN}, s{sN}, 1", f"s_bitcmp0_b64 s[{sEV}:{sEV+1}], s{sN}"]

def last_mask(A, sub):
    e = A.e
    rb = sRBA if sub == "A" else sRBB
    Lodd, Ldone = A.newlabel("odd"), A.newlabel("mdone")
    def diag(c):
        for i in range(4): e(f"v_add_f32 v{c+i}, v{c+i}, v{vTRI+i}")
        for i in range(4): e(f"v_mov_b32 v{c+4+i}, {NEG}")
        for i in range(4): e(f"v_add_f32 v{c+12+i}, v{c+12+i}, v{vTRI+i}")
    e(f"s_bitcmp1_b32 s{rb}, 0"); e(f"s_cbranch_scc1 {Lodd}")
    diag(vC[sub][0])
    for r_ in range(16): e(f"v_mov_b32 v{vC[sub][1]+r_}, v{vC[sub][0]+4}")
    e(f"s_branch {Ldone}")
    A.label(Lodd)
    diag(vC[sub][1])
    A.label(Ldone)
    e("s_nop 0")

def epilogue(A, sub):
    e = A.e
    rb = sRBA if sub == "A" else sRBB
    bad = sBAD if sub == "A" else sBAD + 2
    e(f"s_lshl_b32 s{sT}, s{rb}, 18"); e(f"s_lshl_b32 s{sT2}, s{sH}, 12")
    e(f"s_add_u32 s{sT}, s{sT}, s{sT2}"); e(f"s_add_u32 s{sT}, s{sT}, {WS_CTX}"); e(f"s_add_u32 s{sT2}, s{sT}, 131072")
    e("s_nop 2")
    e(f"v_accvgpr_read_b32 v{vE}, a{aL[sub]}"); e(f"v_accvgpr_read_b32 v{vE+2}, a{aL[sub]+4}")
    e(f"v_mov_b32 v{vE+1}, 0x71800000")
    e(f"v_add_f32 v{vE+3}, v{vE}, v{vE+2}")
    e(f"v_cmp_nlt_f32 s[{bad}:{bad+1}], v{vE+3}, v{vE+1}")
    e(f"v_rcp_f32 v{vE}, v{vE}"); e(f"v_rcp_f32 v{vE+2}, v{vE+2}"); e(f"v_mov_b32 v{vE+1}, v{vE}"); e(f"v_mov_b32 v{vE+3}, v{vE+2}")
    for f in range(8):
        qt = f // 4
        t = vE + 4 + (f % 2) * 12
        for k in range(8): e(f"v_accvgpr_read_b32 v{t+4+k}, a{aO[sub]+8*f+k}")
        for k in range(4): e(f"v_pk_mul_f32 {v(t+4+2*k,2)}, {v(t+4+2*k,2)}, {v(vE+2*qt,2)}")
        for k in range(4): e(f"v_cvt_pk_bf16_f32 v{t+k}, v{t+4+2*k}, v{t+5+2*k}")
        e(f"buffer_store_dwordx4 {v(t,4)}, v{vLIN}, s[{S_WS}:{S_WS+3}], s{sT if qt == 0 else sT2} offen offset:{(f%4)*1024}{SC1}")

def rowmax(sub, t):
    S = vS[sub]
    ops = []
    for qt in range(2):
        b = S + 8 * qt
        ops += [f"v_max3_f32 v{t+qt}, v{b}, v{b+1}, v{b+2}", f"v_max3_f32 v{t+qt}, v{t+qt}, v{b+3}, v{b+4}",
                f"v_max3_f32 v{t+qt}, v{t+qt}, v{b+5}, v{b+6}", f"v_max_f32 v{t+qt}, v{t+qt}, v{b+7}"]
    for sw in ("v_permlane16_swap_b32", "v_permlane32_swap_b32"):
        ops += [f"v_mov_b32 v{t+2}, v{t}", f"v_mov_b32 v{t+3}, v{t+1}", "s_nop 0", f"{sw} v{t}, v{t+2}", f"{sw} v{t+1}, v{t+3}",
                f"v_max_f32 v{t}, v{t}, v{t+2}", f"v_max_f32 v{t+1}, v{t+1}, v{t+3}"]
    ops += [f"v_sub_f32 v{S+k}, v{S+k}, v{t+k//8}" for k in range(16)]
    return ops
def fillc(sub, t, b): return [f"v_sub_f32 v{vC[sub][b]+k}, 0, v{t+k//8}" for k in range(16)]

def dual_body(first=False):
    mf = []; g = {}
    for half in range(2):
        f = first and half == 1
        mf += qk("A", vS["A"], vC["A"][half]) + pv("A", vP["A"], f) + qk("B", vS["B"], vC["B"][half]) + pv("B", vP["B"], f)
    closed = {15}
    d, tail = dma_ops()
    for half in range(2):
        o = 68 * half
        kr = kread(1 - half); vr = vread(half)
        for i in range(8):
            add_gap(g, o + 42 + 2 * i, kr[i]); add_gap(g, o + 59 + i, vr[i])
    cyc_waits(mf, g, [15, 67, 82, 135], extra={15: "vmcnt(16)"}, force={15: set(vread(1))})
    g[15].append("s_barrier")
    place_vm(g, d, [70, 75, 80, 85, 90, 95, 100, 105])
    place_salu(g, ring_adv(), 91, 99)
    x = place_salu(g, tail, 106, 130)
    place_salu(g, stage_ctl(), x, 135)
    st_ = []
    for half in range(2):
        o = 68 * half
        a1, p1 = softmax(vS["B"], vP["B"]); a2, p2 = softmax(vS["A"], vP["A"])
        if half == 0: st_.append((f"v_mov_b32 v{vVAD}, v{vKAD}", 0, 50))
        st_ += [(x, o, o + (33 + 4 * (j // 4) if k == "e" else 47)) for x, k, j in a1]
        st_ += [(a2[0][0], o + 26, o + 67)] + [(p1[0][0], o, o + 47)]
        if half == 1: st_.append((f"v_add_u32 v{vKAD}, s{sR}, v{vLIN}", o + 31, o + 41))
        st_ += [(x, o + (26 if j < 8 else 34), o + 66) for x, k, j in a2[1:]]
        st_ += [(p2[0][0], o + 34, o + 67)]
    schedule(g, 136, st_, level=2, closed=closed)
    return mf, g

NPRE = 12
def single_body():
    Pb = (vP["B"], vP["A"])
    mf = []; g = {}
    for half in range(2):
        mf += qk("B", vS["B"], vC["B"][half]) + pv("B", Pb[half])
    d, tail = dma_ops()
    for half in range(2):
        o = 34 * half
        kr = kread(1 - half); vr = vread(half)
        for i in range(8):
            add_gap(g, o + 9 + 2 * i, kr[i]); add_gap(g, (o + 25 + 2 * i) % 68, vr[i])
    BAR = 14
    cyc_waits(mf, g, [BAR, 33, 49, 67], extra={BAR: "vmcnt(16)"}, force={BAR: set(vread(1))})
    g[BAR].append("s_barrier")
    place_vm(g, d, [18, 24, 30, 36, 41, 48, 54, 60])
    place_salu(g, ring_adv(), 19, 36)
    place_salu(g, tail[:2] + stage_ctl(), 61, 67)
    place_salu(g, tail[2:], 0, 10)
    st_ = []
    for half in range(2):
        o = 34 * half
        a1, p1 = softmax(vS["B"], Pb[half], NPRE, 16)
        a2, p2 = softmax(vS["B"], Pb[1 - half], 0, NPRE)
        st_ += [(x, o, o + (11 if k == "e" else 22)) for x, k, j in a1]
        if half == 0: st_.append((f"v_mov_b32 v{vVAD}, v{vKAD}", 5, 24))
        else: st_.append((f"v_add_u32 v{vKAD}, s{sR}, v{vLIN}", o, o + 8))
        st_ += [(p1[0][0], o, o + 22)]
        st_ += [(x, o + 7 + 4 * (j // 4), o + 33) for x, k, j in a2[:-1]] + [(a2[-1][0], o, o + 32)]
        st_ += [(p2[0][0], o + 33, o + 33)]
    schedule(g, 68, st_, level=2, closed={BAR})
    return mf, g, BAR

def events(A, slow, switch):
    e = A.e
    L1, L2, L3 = A.newlabel("e2"), A.newlabel("e4"), A.newlabel("ens")
    e(f"s_cmp_lg_u32 s{sN}, 2"); e(f"s_cbranch_scc1 {L1}")
    e(f"buffer_load_dword v{vFL}, off, s[{S_WS}:{S_WS+3}], s{sF} sc1")
    A.label(L1)
    e(f"s_cmp_lg_u32 s{sN}, 4"); e(f"s_cbranch_scc1 {L2}")
    e("s_waitcnt vmcnt(16)"); e(slow.check(A, vFL, S_WS, sF, 8))
    A.label(L2)
    e(f"s_cmp_lg_u32 s{sN}, s{sNS}"); e(f"s_cbranch_scc1 {L3}")
    e(switch)
    A.label(L3)

def phase_attn(A, vm, slow, switch):
    e = A.e
    e(f"s_waitcnt vmcnt({vm.cnt('kv0')})"); e("s_barrier")
    st(A, "qend")
    e(kread(0) + vread(0))
    d, tail = dma_ops("kv3")
    cvA = [f"v_cvt_pk_bf16_f32 v{vQ['A']+k}, v{QA+2*k}, v{QA+2*k+1}" for k in range(32)] + [f"v_mov_b32 v{vC['A'][0]+k}, 0" for k in range(16)]
    for u in range(4): e(track_list(vm, d[u][0] + cvA[12*u:12*u+12] + [d[u][1]]))
    cvB = [f"v_cvt_pk_bf16_f32 v{vQ['B']+k}, v{QA+64+2*k}, v{QA+64+2*k+1}" for k in range(32)]
    Lz = A.newlabel("q0")
    e(f"s_cmp_lg_u32 s{sRBA}, 0"); e(f"s_cbranch_scc1 {Lz}")
    c = vC["A"][0]
    for i in range(4): e(f"v_mov_b32 v{c+i}, v{vTRI+i}"); e(f"v_mov_b32 v{c+4+i}, {NEG}"); e(f"v_mov_b32 v{c+12+i}, v{vTRI+i}")
    A.label(Lz)
    e("s_waitcnt lgkmcnt(0)"); e(f"s_add_u32 s{sF}, s{sF}, {(F_KV2-F_KV1)*128}")
    g = {}
    schedule(g, 16, [(x, 0, 15) for x in cvB], level=2)
    weave(A, qk("A", vS["A"], vC["A"][0]), g)
    g = {}
    for i, x in enumerate(kread(1)): add_gap(g, 8 + i, x)
    rm = rowmax("A", 28)
    add_gap(g, 0, "s_nop 1"); add_gap(g, 1, "s_nop 1")
    schedule(g, 16, [(x, 0 if i < 4 else 3, 99) for i, x in enumerate(rm[:22])], level=2, start=2, partial=True)
    done = sum(1 for L in g.values() for x in L if not x.startswith("ds_")) - 2
    weave(A, qk("B", vS["B"], "0"), g)
    rest = rm[done:] + sm_flat(vS["A"], vP["A"]) + fillc("A", 28, 1) + fillc("A", 28, 0)
    per = -(-len(rest) // 4)
    for u in range(4, 8): e(track_list(vm, d[u][0] + rest[per*(u-4):per*(u-3)] + [d[u][1]]))
    e(tail)
    e(rowmax("B", 28)); e(fillc("B", 28, 1)); e(fillc("B", 28, 0))
    Lnm = A.newlabel("nomask")
    e(f"s_cmp_lg_u32 s{sNA}, 1"); e(f"s_cbranch_scc1 {Lnm}")
    last_mask(A, "A")
    A.label(Lnm)
    e(f"s_waitcnt vmcnt({vm.cnt('kv1','st3')}) lgkmcnt(0)"); e("s_barrier")
    e(signal(A, S_WS, sF, vFL, wave=3))
    st(A, "pro")
    mf, g = dual_body(first=True)
    weave(A, mf[68:], {k - 68: x for k, x in g.items() if k >= 68})
    e("s_branch L_dual_end")
    mf, g = dual_body()
    if VERBOSE: print("dual", show_gaps(mf, g))
    e(".p2align 6")
    A.label("L_dual")
    weave(A, mf, g)
    A.label("L_dual_end")
    e("s_cbranch_scc1 L_dual")
    events(A, slow, switch)
    e(f"s_cmp_ge_u32 s{sN}, s{sNA}"); e("s_cbranch_scc1 L_trans")
    e(f"s_add_u32 s{sT2}, s{sN}, 1"); e(f"s_cmp_lg_u32 s{sT2}, s{sNA}"); e("s_cbranch_scc1 L_dual")
    last_mask(A, "A")
    e("s_branch L_dual")
    A.label("L_trans")
    e("s_waitcnt lgkmcnt(0)")
    g = {}
    add_gap(g, 12, ["s_waitcnt vmcnt(16)", "s_barrier"])
    o, p = softmax(vS["B"], vP["B"], 0, NPRE)
    schedule(g, 18, [(x[0], 0, 16) for x in o] + [(p[0][0], 17, 17)], level=2, closed={12})
    weave(A, pv("A", vP["A"]), g)
    Lsk = A.newlabel("noepi")
    e(f"s_cmp_ge_u32 s{sW}, 2"); e(f"s_cbranch_scc1 {Lsk}")
    epilogue(A, "A")
    A.label(Lsk)
    Lnm = A.newlabel("nomask")
    e(f"s_add_u32 s{sT2}, s{sN}, 1"); e(f"s_cmp_lg_u32 s{sT2}, s{sNB}"); e(f"s_cbranch_scc1 {Lnm}")
    last_mask(A, "B")
    A.label(Lnm)
    mf, g, BAR = single_body()
    if VERBOSE: print("single", show_gaps(mf, g))
    wrapped = set(vread(1))
    g1 = {k: [y for y in x if y != "s_barrier" and y not in wrapped and not y.startswith("s_waitcnt vmcnt")] for k, x in g.items() if k <= BAR}
    e("s_nop 0")
    weave(A, mf[:BAR+1], g1)
    e("s_branch L_single_mid")
    e(".p2align 6")
    A.label("L_single")
    weave(A, mf[:BAR+1], g)
    A.label("L_single_mid")
    weave(A, mf[BAR+1:], {k - BAR - 1: x for k, x in g.items() if k > BAR})
    e("s_cbranch_scc1 L_single")
    events(A, slow, switch)
    e(f"s_cmp_ge_u32 s{sN}, s{sNB}"); e("s_cbranch_scc1 L_drain")
    e(f"s_add_u32 s{sT2}, s{sN}, 1"); e(f"s_cmp_lg_u32 s{sT2}, s{sNB}"); e("s_cbranch_scc1 L_single")
    last_mask(A, "B")
    e("s_branch L_single")
    A.label("L_drain")
    st(A, "attn")
    e([y for k in range(BAR + 1) for y in g.get(k, []) if y in wrapped])
    e(sm_flat(vS["B"], vP["B"], NPRE, 16))
    e("s_waitcnt lgkmcnt(0)")
    Lnb = A.newlabel("nobar")
    e(f"s_cmp_lt_u32 s{sW}, 2"); e(f"s_cbranch_scc1 {Lnb}")
    e("s_barrier")
    A.label(Lnb)
    e(pv("B", vP["B"]))
    Lsk = A.newlabel("noepi")
    e(f"s_cmp_lt_u32 s{sW}, 2"); e(f"s_cbranch_scc1 {Lsk}")
    epilogue(A, "A")
    A.label(Lsk)
    epilogue(A, "B")
    st(A, "epi")

def gen_front(A, name):
    kernel_header(A, name)
    e = A.e
    e("s_cmp_ge_u32 s2, 256"); e("s_cbranch_scc1 L_end")
    st(A, "start")
    vm = VM(); slow = Slow()
    vm, Q = phase_kv(A, vm, slow)
    phase_q(A, vm, slow, Q)
    phase_attn(A, vm, slow, [f"s_mov_b32 s{S_KV+2}, 0"])
    if STAMPS_ON(): e("s_waitcnt vmcnt(0)")
    st(A, "end")
    st_flush(A)
    A.label("L_end")
    e("s_endpgm")
    slow.emit(A)
```

```python
import sys
from asmlib import *
import k1, k2, tail
import chk

def build(kernels):
    hdr = open(f"cdna_kernels/{NAME}.s.ref").read().split("; Override launch")[0]
    A = Asm()
    launches = []; descs = []
    for name, fn, grid, lds, kw in kernels:
        fn(A, name)
        launches.append(f"; @launch kernel={name} grid=({grid},1,1) block=(256,1,1) lds={lds}")
        descs.append(descriptor(name, **kw))
    txt = hdr + "\n".join(launches) + '\n.amdgcn_target "amdgcn-amd-amdhsa--gfx950"\n.text\n' + A.text()
    txt += ".fill 16384, 4, 0xbf810000\n"
    txt += '.section .rodata,"a"\n' + "".join(descs)
    return txt

KERNELS = [("k1_kernel", k1.gen_k1, 256, 163840, {}), ("k2_kernel", k2.gen_k2, 256, 163840, {}),
           ("kd_kernel", tail.gen_d, 256, 163840, {}), ("ke_kernel", tail.gen_e, 256, 163840, {}), ("kf_kernel", tail.gen_f, 256, 163840, {})]

if __name__ == "__main__":
    txt = build(KERNELS)
    out = sys.argv[1] if len(sys.argv) > 1 else "out.s"
    open(out, "w").write(txt)
    errs, n = chk.check(txt, [k[0] for k in KERNELS])
    print(n, "instructions,", len(errs), "problems")
    for x in errs[:40]: print(x)
```

```python
from asmlib import *

SLOT = 32768
NSLOT = 5
RING = SLOT * NSLOT

def gen_k1(A, name):
    kernel_header(A, name)
    e = A.e
    Lend = "L_k1_end"
    e("s_cmp_ge_u32 s2, 256"); e(f"s_cbranch_scc1 {Lend}")
    stamp(A, 0)
    S_C, S_W, S_WS, S_X = 4, 8, 12, 16
    sW, sH, sJ = 20, 21, 22
    sGC, sGW = 23, 24
    sMC, sMW = 25, 26
    sN, sT, sT2 = 27, 28, 29
    sDC, sDW = 30, 31
    sRC, sRW = 32, 33
    e(f"s_load_dwordx4 s[40:43], s[0:1], {KA_X}")
    e(f"s_load_dwordx4 s[44:47], s[0:1], {KA_WUK}")
    e(f"s_load_dwordx2 s[48:49], s[0:1], {KA_WS}")
    vL = 1
    vDC = (2, 3); vDW = (4, 5)
    vRC = (6, 7); vRW = list(range(8, 16))
    vST = 16
    vT = 20
    FA = (128, 192)
    e("v_and_b32 v1, 63, v0"); e("v_lshrrev_b32 v20, 6, v0"); e("s_nop 0"); e(f"v_readfirstlane_b32 s{sW}, v20")
    e(f"s_and_b32 s{sH}, s2, 31"); e(f"s_lshr_b32 s{sJ}, s2, 5")
    e("s_getpc_b64 s[50:51]"); e("v_lshlrev_b32 v20, 6, v0"); e("global_load_dword v63, v20, s[50:51]")
    e("v_lshrrev_b32 v20, 3, v1"); e("v_lshlrev_b32 v20, 10, v20")
    e("v_and_b32 v21, 7, v1"); e("v_lshrrev_b32 v22, 4, v1"); e("v_xor_b32 v21, v21, v22")
    e(f"v_lshl_add_u32 v{vDC[0]}, v21, 4, v20"); e(f"v_xor_b32 v{vDC[1]}, 64, v{vDC[0]}")
    e("v_lshlrev_b32 v20, 13, v22"); e("v_lshlrev_b32 v23, 2, v22"); e("v_and_b32 v21, 15, v1"); e("v_xor_b32 v23, v21, v23")
    e(f"v_lshl_add_u32 v{vDW[0]}, v23, 4, v20"); e(f"v_xor_b32 v{vDW[1]}, 32, v{vDW[0]}")
    e("s_waitcnt lgkmcnt(0)")
    A.srd(S_C, 42, 2 << 20)
    e(f"s_cmp_lt_u32 s{sW}, 2"); e(f"s_cselect_b32 s{S_W}, s44, s46"); e(f"s_cselect_b32 s{S_W+1}, s45, s47")
    e(f"s_mov_b32 s{S_W+2}, {4<<20:#x}"); e(f"s_mov_b32 s{S_W+3}, 0x20000")
    A.srd(S_WS, 48, WS_BYTES)
    A.srd(S_X, 40, 2 << 20)
    e(f"s_and_b32 s{sT}, s{sW}, 1"); e(f"s_lshl_b32 s{sT}, s{sT}, 2"); e(f"s_lshr_b32 s{sT2}, s{sW}, 1"); e(f"s_add_u32 s{sT}, s{sT}, s{sT2}")
    e(f"s_lshl_b32 s{sT}, s{sT}, 18"); e(f"s_lshl_b32 s{sGC}, s{sJ}, 15"); e(f"s_add_u32 s{sGC}, s{sGC}, s{sT}")
    e(f"s_and_b32 s{sT}, s{sW}, 1"); e(f"s_lshl_b32 s{sGW}, s{sT}, 18"); e(f"s_lshl_b32 s{sT2}, s{sH}, 8"); e(f"s_add_u32 s{sGW}, s{sGW}, s{sT2}")
    e(f"s_lshl_b32 s{sMC}, s{sW}, 13"); e(f"s_add_u32 s{sMW}, s{sMC}, {SLOT}")

    def dma_stage(which):
        if which == "c": sG, sM, vD, srd, step, nxt, mid = sGC, sMC, vDC, S_C, 8192, 128, (512 - 24) * 1024
        else: sG, sM, vD, srd, step, nxt, mid = sGW, sMW, vDW, S_W, 32768, 64 * 8192, 32768
        out = []
        for u in range(8):
            pre = []
            if u == 0: pre.append(f"s_mov_b32 m0, s{sM}")
            elif u == 4: pre += [f"s_add_u32 m0, s{sM}, 4096", f"s_add_u32 s{sG}, s{sG}, {mid + 3072}"]
            else: pre.append(f"s_add_u32 s{sG}, s{sG}, {step - 1024}")
            off = f" offset:{(u % 4) * 1024}" if u % 4 else ""
            out.append((pre, f"buffer_load_dwordx4 v{vD[(u & 1) if which == 'c' else (u >> 1) & 1]}, s[{srd}:{srd+3}], s{sG} offen{off} lds"))
        back = 6 * step + mid - 3072 - nxt
        tail = [f"s_sub_u32 s{sG}, s{sG}, {back & 0xffffffff:#x}",
                f"s_add_u32 s{sM}, s{sM}, {2*SLOT}", f"s_cmp_ge_u32 s{sM}, {RING}", f"s_cselect_b32 s{sT}, {RING}, 0", f"s_sub_u32 s{sM}, s{sM}, s{sT}"]
        return out, tail

    def emit_stage(which):
        d, tail = dma_stage(which)
        for pre, m in d:
            e(pre)
            if any("m0" in x for x in pre[-1:]): e("s_nop 0")
            e(m)
        e(tail)

    emit_stage("c"); emit_stage("w")
    e(f"s_lshl_b32 s{sT}, s2, 3"); e(f"s_lshl_b32 s{sT2}, s{sW}, 1"); e(f"s_add_u32 s34, s{sT}, s{sT2}")
    e(f"s_lshl_b32 s35, s34, 10"); e("v_lshlrev_b32 v20, 4, v1")
    e(f"buffer_load_dwordx4 v[24:27], v20, s[{S_X}:{S_X+3}], s35 offen")
    e(f"buffer_load_dwordx4 v[28:31], v20, s[{S_X}:{S_X+3}], s35 offen offset:1024")
    emit_stage("c"); emit_stage("w"); emit_stage("c")
    e("v_and_b32 v21, 15, v1"); e("v_lshrrev_b32 v22, 4, v1")
    e(f"v_lshlrev_b32 v{vST}, 4, v1")
    e(f"s_and_b32 s{sT}, s{sW}, 1"); e(f"s_lshl_b32 s{sT}, s{sT}, 14")
    e("v_lshrrev_b32 v32, 1, v21"); e("v_xor_b32 v32, v32, v22"); e("v_lshlrev_b32 v32, 4, v32")
    e("v_lshl_add_u32 v32, v21, 7, v32"); e(f"v_add_u32 v{vRC[0]}, s{sT}, v32"); e(f"v_xor_b32 v{vRC[1]}, 64, v{vRC[0]}")
    e("v_lshrrev_b32 v32, 2, v21"); e("v_lshl_add_u32 v33, v22, 3, v32")
    e("v_lshlrev_b32 v32, 2, v32"); e("v_and_b32 v34, 1, v22"); e("v_lshl_add_u32 v32, v34, 1, v32")
    e("v_bfe_u32 v34, v21, 1, 1"); e("v_xor_b32 v32, v32, v34"); e("v_lshlrev_b32 v32, 4, v32")
    e("v_lshl_add_u32 v32, v33, 8, v32"); e("v_and_b32 v34, 1, v21"); e("v_lshl_add_u32 v32, v34, 3, v32")
    e(f"s_lshr_b32 s{sT}, s{sW}, 1"); e(f"s_lshl_b32 s{sT}, s{sT}, 14"); e(f"s_add_u32 s{sT}, s{sT}, {SLOT}")
    e(f"v_add_u32 v{vRW[0]}, s{sT}, v32")
    for ct in range(1, 8):
        e(f"v_xor_b32 v{vRW[ct]}, {ct*32}, v{vRW[0]}")
    e(f"s_mov_b32 s{sRC}, 0"); e(f"s_mov_b32 s{sRW}, {SLOT}")
    e("s_waitcnt vmcnt(24)")
    for rr in range(2):
        src = 24 + 4 * rr; dst = 36 + 8 * rr
        for k in range(4):
            e(f"v_lshlrev_b32 v{dst+2*k}, 16, v{src+k}"); e(f"v_and_b32 v{dst+2*k+1}, 0xffff0000, v{src+k}")
    for rr in range(2):
        dst = 36 + 8 * rr
        e(f"v_add_f32 v{52+rr}, v{dst}, v{dst+1}")
        for k in range(2, 8): e(f"v_add_f32 v{52+rr}, v{52+rr}, v{dst+k}")
    wave_sum_multi(A, [52, 53])
    e("s_nop 0"); e("v_readlane_b32 s36, v52, 63"); e("v_readlane_b32 s37, v53, 63")
    e("v_mov_b32 v54, 0xbb000000")
    e("s_nop 0")
    for rr in range(2):
        dst = 36 + 8 * rr
        for k in range(8): e(f"v_fma_f32 v{dst+k}, s{36+rr}, v54, v{dst+k}")
    for rr in range(2):
        dst = 36 + 8 * rr
        e(f"v_mul_f32 v{52+rr}, v{dst}, v{dst}")
        for k in range(1, 8): e(f"v_fmac_f32 v{52+rr}, v{dst+k}, v{dst+k}")
    wave_sum_multi(A, [52, 53])
    e("s_nop 0"); e("v_readlane_b32 s36, v52, 63"); e("v_readlane_b32 s37, v53, 63")
    e("v_mov_b32 v54, 0x3b000000"); e("v_mov_b32 v55, 0x3727c5ac")
    e("v_fma_f32 v52, s36, v54, v55"); e("v_fma_f32 v53, s37, v54, v55")
    e("v_rsq_f32 v52, v52"); e("v_rsq_f32 v53, v53"); e("s_nop 0")
    e("v_mul_f32 v52, 0x3e0293ee, v52"); e("v_mul_f32 v53, 0x3e0293ee, v53")
    for rr in range(2):
        dst = 36 + 8 * rr
        for k in range(8): e(f"v_mul_f32 v{dst+k}, v{dst+k}, v{52+rr}")
        for k in range(4): e(f"v_cvt_pk_bf16_f32 v{24+4*rr+k}, v{dst+2*k}, v{dst+2*k+1}")
    e("s_lshr_b32 s35, s34, 4"); e("s_lshl_b32 s35, s35, 14"); e("s_and_b32 s34, s34, 15"); e("s_lshl_b32 s34, s34, 4")
    e("s_add_u32 s35, s35, s34"); e(f"s_add_u32 s35, s35, {WS_XN}")
    e("v_lshlrev_b32 v20, 8, v1")
    e(f"buffer_store_dwordx4 v[24:27], v20, s[{S_WS}:{S_WS+3}], s35 offen")
    e(f"buffer_store_dwordx4 v[28:31], v20, s[{S_WS}:{S_WS+3}], s35 offen offset:16")
    e("s_barrier")
    stamp(A, 1)
    e(f"s_cmp_ge_u32 s{sW}, 2"); e("s_cbranch_scc1 L_k1_v")

    def reads(buf, ks):
        out = []
        cb, wb = FA[buf], FA[buf] + 32
        cr = [f"ds_read_b128 {v(cb+4*rt,4)}, v{vRC[ks]} offset:{rt*2048}" for rt in range(8)]
        wr = [[f"ds_read_b64_tr_b16 {v(wb+4*ct+2*hf,2)}, v{vRW[ct]} offset:{ks*8192 + hf*1024}" for hf in range(2)] for ct in range(8)]
        for i in range(8): out += [cr[i]] + wr[i]
        return out

    def mfmas(buf, isV, first=False, order=None):
        cb, wb = FA[buf], FA[buf] + 32
        ab, bb = (cb, wb) if isV else (wb, cb)
        out = []
        order = order or [(i, j if i % 2 == 0 else 7 - j) for i in range(8) for j in range(8)]
        for (i, j) in order:
            c = (i * 8 + j) * 4
            out.append(f"v_mfma_f32_16x16x32_bf16 {a(c,4)}, {v(ab+4*i,4)}, {v(bb+4*j,4)}, {'0' if first else a(c,4)}")
        return out

    def addr_advance():
        sl = []
        for sR, sD in ((sRC, sDC), (sRW, sDW)):
            sl += [f"s_add_u32 s{sR}, s{sR}, {2*SLOT}", f"s_cmp_ge_u32 s{sR}, {RING}",
                   f"s_cselect_b32 s{sT2}, {RING}, 0", f"s_sub_u32 s{sR}, s{sR}, s{sT2}", f"s_sub_u32 s{sD}, {2*SLOT}, s{sT2}"]
        vl = [f"v_add_u32 v{x}, s{sDC}, v{x}" for x in vRC] + [f"v_add_u32 v{x}, s{sDW}, v{x}" for x in vRW]
        return sl, vl

    for isV in (0, 1):
        tag = "v" if isV else "k"
        if isV: A.label("L_k1_v")
        e(reads(0, 0)); e("s_waitcnt lgkmcnt(0)")
        g = {}
        for i, x in enumerate(reads(1, 1)): add_gap(g, 2 * i, x)
        sl, vl = addr_advance()
        for i, x in enumerate(sl): add_gap(g, 2 * i + 1, x)
        for i, x in enumerate(vl): add_gap(g, 50 + i, x)
        add_gap(g, 62, f"s_mov_b32 s{sN}, 0")
        weave(A, mfmas(0, isV, first=True), g)
        A.label(f"L_k1_loop_{tag}")
        e("s_waitcnt vmcnt(8) lgkmcnt(0)"); e("s_barrier")
        for half in range(2):
            g = {}
            rd = reads(half, half)
            d, tail = dma_stage("w" if half == 0 else "c")
            for u in range(8):
                for k in range(3): add_gap(g, 6 * u + k, rd[3 * u + k])
                for k, x in enumerate(d[u][0]): add_gap(g, 6 * u + 3 - (len(d[u][0]) - 1) + k, x) if k or len(d[u][0]) == 1 else g[6 * u + 2].insert(0, x)
                add_gap(g, 6 * u + 4, d[u][1])
            sl, vl = addr_advance()
            if half == 0:
                for i, x in enumerate(tail + sl): add_gap(g, 47 + i, x)
                add_gap(g, 63, "s_waitcnt lgkmcnt(0)")
            else:
                for i, x in enumerate(tail): add_gap(g, 47 + i, x)
                for i, x in enumerate(vl): add_gap(g, 48 + i, x)
                add_gap(g, 5, f"s_add_u32 s{sN}, s{sN}, 1")
                for i, x in enumerate([f"s_cmp_eq_u32 s{sN}, 5", f"s_cselect_b32 s{S_C+2}, 0, s{S_C+2}", f"s_cmp_eq_u32 s{sN}, 6", f"s_cselect_b32 s{S_W+2}, 0, s{S_W+2}",
                                       f"s_cmp_lt_u32 s{sN}, 7"]): add_gap(g, 58 + i, x)
            weave(A, mfmas(1 - half, isV), g)
        e(f"s_cbranch_scc1 L_k1_loop_{tag}")
        e("s_waitcnt lgkmcnt(0)")
        order = [(2 * ip + t, j) for ip in range(4) for j in range(8) for t in range(2)]
        weave(A, mfmas(1, isV, order=order), {})
        stamp(A, 2)
        e(f"s_lshl_b32 s34, s{sH}, 20"); e(f"s_lshl_b32 s35, s{sJ}, 14"); e("s_add_u32 s34, s34, s35")
        e(f"s_and_b32 s35, s{sW}, 1"); e("s_lshl_b32 s35, s35, 17"); e("s_add_u32 s34, s34, s35")
        if isV: e("s_add_u32 s34, s34, 8192")
        n = 0
        for ip in range(4):
            for j in range(8):
                t = 64 + (n % 4) * 12; n += 1
                for tt in range(2):
                    c = ((2 * ip + tt) * 8 + j) * 4
                    for i in range(4): e(f"v_accvgpr_read_b32 v{t+4+tt*4+i}, a{c+i}")
                for k in range(4): e(f"v_cvt_pk_bf16_f32 v{t+k}, v{t+4+2*k}, v{t+5+2*k}")
                pr, fr = (ip, j) if isV else (j >> 1, (j & 1) * 4 + ip)
                e(f"s_add_u32 s35, s34, {pr*262144 + (fr>>2)*4096}")
                e(f"buffer_store_dwordx4 {v(t,4)}, v{vST}, s[{S_WS}:{S_WS+3}], s35 offen offset:{(fr&3)*1024}")
        stamp(A, 3)
        if STAMPS_ON(): e("s_waitcnt vmcnt(0)")
        stamp(A, 4)
        stamp_flush(A, 0, 5, S_WS, sW)
        e("s_endpgm")
    A.label(Lend)
    e("s_endpgm")
```

```python
from asmlib import *

SLOT = 32768
RING = 5 * SLOT
MF = "v_mfma_f32_16x16x32_bf16"
vLIN, vKAD, vVAD = 2, 3, 4
vRW = list(range(5, 13)); vDW = (13, 14)
vTRI = 16
vTMP = 20
vS = {"A": 32, "B": 48}
vP = {"A": 112, "B": 120}
vQ = {"A": 64, "B": 192}
vC = {"A": (128, 144), "B": (160, 176)}
vE = 224
aO = {"A": 0, "B": 64}
aK, aV = 128, 160
aL = {"A": 192, "B": 200}
aONE = 208
S_W, S_WS, S_KV = 4, 8, 12
sW, sH, sI, sRBA, sRBB = 20, 21, 22, 23, 24
sN, sNA, sNB, sNS = 25, 26, 27, 28
sG, sM, sR, sD, sT, sT2 = 29, 30, 31, 32, 33, 34
sBAD = 36
NEG = "0xf149f2ca"
VERBOSE = False

def qk(sub, S, C):
    out = []
    for qt in range(2):
        for kt in range(2):
            d = S + (qt * 2 + kt) * 4
            for u in range(4):
                c = v(d, 4) if u else (C if isinstance(C, str) else v(C + (qt * 2 + kt) * 4, 4))
                out.append(f"{MF} {v(d,4)}, {a(aK+16*kt+4*u,4)}, {v(vQ[sub]+16*qt+4*u,4)}, {c}")
    return out

def pv(sub, P, first=False):
    out = []
    for qt in range(2):
        for dt in range(8):
            o = a(aO[sub] + 32 * qt + 4 * dt, 4)
            out.append(f"{MF} {o}, {a(aV+4*dt,4)}, {v(P+4*qt,4)}, {'0' if first else o}")
        o = a(aL[sub] + 4 * qt, 4)
        out.append(f"{MF} {o}, {a(aONE,4)}, {v(P+4*qt,4)}, {'0' if first else o}")
    return out

def kread(tile): return [f"ds_read_b128 {a(aK+4*f,4)}, v{vKAD} offset:{tile*16384 + f*1024}" for f in range(8)]
def vread(tile): return [f"ds_read_b128 {a(aV+4*f,4)}, v{vVAD} offset:{tile*16384 + 8192 + f*1024}" for f in range(8)]

def softmax(S, P, lo=0, hi=16):
    out = []; pend = []
    T = lambda j: vTMP + (j % 6)
    for j in range(lo, hi):
        out.append((f"v_exp_f32 v{T(j)}, v{S+j}", "e", j))
        out += pend; pend = []
        if j % 2: pend.append((f"v_cvt_pk_bf16_f32 v{P+j//2}, v{T(j-1)}, v{T(j)}", "c", j))
    return out, pend

def sm_flat(S, P, lo=0, hi=16):
    o, p = softmax(S, P, lo, hi)
    return [x[0] for x in o] + ["s_nop 0"] + [x[0] for x in p]

def dma_ops():
    out = []
    for u in range(8):
        pre = []
        if u == 0: pre = [f"s_mov_b32 m0, s{sM}"]
        if u == 4: pre = [f"s_add_u32 m0, s{sM}, 4096", f"s_add_u32 s{sG}, s{sG}, 4096"]
        off = f" offset:{(u%4)*1024}" if u % 4 else ""
        out.append((pre, f"buffer_load_dwordx4 v{vLIN}, s[{S_KV}:{S_KV+3}], s{sG} offen{off} lds"))
    tail = [f"s_add_u32 s{sG}, s{sG}, {SLOT-4096}", f"s_add_u32 s{sM}, s{sM}, {SLOT}",
            f"s_cmp_ge_u32 s{sM}, {RING}", f"s_cselect_b32 s{sT}, {RING}, 0", f"s_sub_u32 s{sM}, s{sM}, s{sT}"]
    return out, tail

def ring_adv():
    return [f"s_add_u32 s{sR}, s{sR}, {SLOT}", f"s_cmp_ge_u32 s{sR}, {RING}", f"s_cselect_b32 s{sT2}, {RING}, 0", f"s_sub_u32 s{sR}, s{sR}, s{sT2}"]

def stage_ctl(lim):
    return [f"s_add_u32 s{sN}, s{sN}, 1", f"s_add_u32 s{sT2}, s{sN}, 4", f"s_cmp_ge_u32 s{sT2}, s{sNS}", f"s_cselect_b32 s{S_KV+2}, 0, s{S_KV+2}",
            f"s_add_u32 s{sT2}, s{sN}, 1", f"s_cmp_lt_u32 s{sT2}, s{lim}"]

def place_salu(g, ops, start, ngaps):
    gi = start
    for x in ops:
        while g.get(gi) and (g[gi][0].startswith("s_") or g[gi][0].startswith("buffer_")): gi += 1
        assert gi < ngaps, (x, gi)
        g.setdefault(gi, []).insert(0, x); gi += 1
    return gi

def last_mask(A, sub):
    e = A.e
    rb = sRBA if sub == "A" else sRBB
    Lodd, Ldone = A.newlabel("odd"), A.newlabel("mdone")
    def diag(c):
        for i in range(4): e(f"v_add_f32 v{c+i}, v{c+i}, v{vTRI+i}")
        for i in range(4): e(f"v_mov_b32 v{c+4+i}, {NEG}")
        for i in range(4): e(f"v_add_f32 v{c+12+i}, v{c+12+i}, v{vTRI+i}")
    e(f"s_bitcmp1_b32 s{rb}, 0"); e(f"s_cbranch_scc1 {Lodd}")
    diag(vC[sub][0])
    for r in range(16): e(f"v_mov_b32 v{vC[sub][1]+r}, v{vC[sub][0]+4}")
    e(f"s_branch {Ldone}")
    A.label(Lodd)
    diag(vC[sub][1])
    A.label(Ldone)
    e("s_nop 1")

def epilogue(A, sub):
    e = A.e
    rb = sRBA if sub == "A" else sRBB
    bad = sBAD if sub == "A" else sBAD + 2
    e(f"s_lshl_b32 s{sT}, s{rb}, 18"); e(f"s_lshl_b32 s{sT2}, s{sH}, 12")
    e(f"s_add_u32 s{sT}, s{sT}, s{sT2}"); e(f"s_add_u32 s{sT}, s{sT}, {WS_CTX}"); e(f"s_add_u32 s{sT2}, s{sT}, 131072")
    e("s_nop 2")
    e(f"v_accvgpr_read_b32 v{vE}, a{aL[sub]}"); e(f"v_accvgpr_read_b32 v{vE+2}, a{aL[sub]+4}")
    e(f"v_mov_b32 v{vE+1}, 0x71800000")
    e(f"v_add_f32 v{vE+3}, v{vE}, v{vE+2}")
    e(f"v_cmp_nlt_f32 s[{bad}:{bad+1}], v{vE+3}, v{vE+1}")
    e(f"v_rcp_f32 v{vE}, v{vE}"); e(f"v_rcp_f32 v{vE+2}, v{vE+2}"); e(f"v_mov_b32 v{vE+1}, v{vE}"); e(f"v_mov_b32 v{vE+3}, v{vE+2}")
    for f in range(8):
        qt = f // 4
        t = vE + 4 + (f % 2) * 12
        for k in range(8): e(f"v_accvgpr_read_b32 v{t+4+k}, a{aO[sub]+8*f+k}")
        for k in range(4): e(f"v_pk_mul_f32 {v(t+4+2*k,2)}, {v(t+4+2*k,2)}, {v(vE+2*qt,2)}")
        for k in range(4): e(f"v_cvt_pk_bf16_f32 v{t+k}, v{t+4+2*k}, v{t+5+2*k}")
        e(f"buffer_store_dwordx4 {v(t,4)}, v{vLIN}, s[{S_WS}:{S_WS+3}], s{sT if qt == 0 else sT2} offen offset:{(f%4)*1024}")

def rowmax(sub, t):
    S = vS[sub]
    ops = []
    for qt in range(2):
        b = S + 8 * qt
        ops += [f"v_max3_f32 v{t+qt}, v{b}, v{b+1}, v{b+2}", f"v_max3_f32 v{t+qt}, v{t+qt}, v{b+3}, v{b+4}",
                f"v_max3_f32 v{t+qt}, v{t+qt}, v{b+5}, v{b+6}", f"v_max_f32 v{t+qt}, v{t+qt}, v{b+7}"]
    for sw in ("v_permlane16_swap_b32", "v_permlane32_swap_b32"):
        ops += [f"v_mov_b32 v{t+2}, v{t}", f"v_mov_b32 v{t+3}, v{t+1}", "s_nop 0", f"{sw} v{t}, v{t+2}", f"{sw} v{t+1}, v{t+3}",
                f"v_max_f32 v{t}, v{t}, v{t+2}", f"v_max_f32 v{t+1}, v{t+1}, v{t+3}"]
    ops += [f"v_sub_f32 v{S+k}, v{S+k}, v{t+k//8}" for k in range(16)]
    return ops

def fillc(sub, t, b): return [f"v_sub_f32 v{vC[sub][b]+k}, 0, v{t+k//8}" for k in range(16)]

def dual_body(first=False):
    mf = []; g = {}
    for half in range(2):
        f = first and half == 1
        mf += qk("A", vS["A"], vC["A"][half]) + pv("A", vP["A"], f) + qk("B", vS["B"], vC["B"][half]) + pv("B", vP["B"], f)
    closed = {15}
    d, tail = dma_ops()
    for half in range(2):
        o = 68 * half
        kr = kread(1 - half); vr = vread(half)
        for i in range(8):
            add_gap(g, o + 42 + 2 * i, kr[i])
            add_gap(g, o + 59 + i, vr[i])
    for u, p in enumerate([18, 23, 28, 33, 38, 71, 77, 83]): add_gap(g, p, d[u][1])
    cyc_waits(mf, g, [15, 67, 83 - 1, 135], extra={15: "vmcnt(16)"}, force={15: set(vread(1))})
    g[15].append("s_barrier")
    place_salu(g, d[0][0], 16, 18); place_salu(g, d[4][0], 34, 38)
    x = place_salu(g, ring_adv(), 72, 108)
    x = place_salu(g, tail, 84, 108)
    place_salu(g, stage_ctl(sNA), x, 135)
    st = []
    for half in range(2):
        o = 68 * half
        a1, p1 = softmax(vS["B"], vP["B"]); a2, p2 = softmax(vS["A"], vP["A"])
        if half == 0: st.append((f"v_mov_b32 v{vVAD}, v{vKAD}", 0, 50))
        st += [(x, o, o + (33 + 4 * (j // 4) if k == "e" else 47)) for x, k, j in a1]
        st += [(a2[0][0], o + 26, o + 67)] + [(p1[0][0], o, o + 47)]
        if half == 1: st.append((f"v_add_u32 v{vKAD}, s{sR}, v{vLIN}", o + 20, o + 40))
        st += [(x, o + (26 if j < 8 else 34), o + 66) for x, k, j in a2[1:]]
        st += [(p2[0][0], o + 34, o + 67)]
    schedule(g, 136, st, level=2, closed=closed, strict_tail=True)
    return mf, g

NPRE = 12
def single_body():
    Pb = (vP["B"], vP["A"])
    mf = []; g = {}
    for half in range(2):
        mf += qk("B", vS["B"], vC["B"][half]) + pv("B", Pb[half])
    d, tail = dma_ops()
    kpos = [9, 11, 13, 15, 17, 19, 21, 23]
    vpos = [25, 27, 29, 31, 33, 35, 37, 39]
    for half in range(2):
        o = 34 * half
        kr = kread(1 - half); vr = vread(half)
        for i in range(8):
            add_gap(g, o + kpos[i], kr[i]); add_gap(g, (o + vpos[i]) % 68, vr[i])
    BAR = 14
    for u, p in enumerate([18, 24, 30, 36, 41, 48, 54, 60]): add_gap(g, p, d[u][1])
    cyc_waits(mf, g, [BAR, 33, 49, 67], extra={BAR: "vmcnt(16)"}, force={BAR: set(vread(1))})
    g[BAR].append("s_barrier")
    place_salu(g, d[0][0], 16, 18); place_salu(g, d[4][0], 37, 41)
    place_salu(g, ring_adv(), 19, 36)
    place_salu(g, stage_ctl(sNB)[:2], 42, 60)
    place_salu(g, tail[:2] + stage_ctl(sNB)[2:], 61, 67)
    place_salu(g, tail[2:], 0, 10)
    st = []
    for half in range(2):
        o = 34 * half
        a1, p1 = softmax(vS["B"], Pb[half], NPRE, 16)
        a2, p2 = softmax(vS["B"], Pb[1 - half], 0, NPRE)
        st += [(x, o, o + (11 if k == "e" else 22)) for x, k, j in a1]
        if half == 0: st.append((f"v_mov_b32 v{vVAD}, v{vKAD}", 5, 24))
        else: st.append((f"v_add_u32 v{vKAD}, s{sR}, v{vLIN}", o, o + 8))
        st += [(p1[0][0], o, o + 22)]
        st += [(x, o + 7 + 4 * (j // 4), o + 33) for x, k, j in a2[:-1]] + [(a2[-1][0], o, o + 32)]
        st += [(p2[0][0], o + 33, o + 33)]
    schedule(g, 68, st, level=2, closed={BAR}, strict_tail=True)
    return mf, g, [], BAR

def gen_k2(A, name):
    kernel_header(A, name)
    e = A.e
    e("s_cmp_ge_u32 s2, 256"); e("s_cbranch_scc1 L_k2_end")
    stamp(A, 0)
    e(f"s_load_dwordx2 s[40:41], s[0:1], {KA_WQ}")
    e(f"s_load_dwordx2 s[42:43], s[0:1], {KA_WS}")
    e("v_and_b32 v1, 63, v0"); e("v_lshrrev_b32 v20, 6, v0"); e("s_nop 0"); e(f"v_readfirstlane_b32 s{sW}, v20")
    e(f"s_and_b32 s{sH}, s2, 31"); e(f"s_lshr_b32 s{sI}, s2, 5")
    vm = VM()
    e("s_getpc_b64 s[50:51]"); e("v_lshlrev_b32 v20, 7, v0"); e("global_load_dword v15, v20, s[50:51]"); vm.issue("pf")
    e(f"v_lshlrev_b32 v{vLIN}, 4, v1")
    e("v_lshrrev_b32 v22, 4, v1"); e("v_and_b32 v21, 15, v1")
    e("v_lshlrev_b32 v20, 13, v22"); e("v_lshlrev_b32 v23, 2, v22"); e("v_xor_b32 v23, v21, v23")
    e(f"v_lshl_add_u32 v{vDW[0]}, v23, 4, v20"); e(f"v_xor_b32 v{vDW[1]}, 32, v{vDW[0]}")
    e(f"s_lshl_b32 s{sRBA}, s{sI}, 2"); e(f"s_add_u32 s{sRBA}, s{sRBA}, s{sW}"); e(f"s_sub_u32 s{sRBB}, 63, s{sRBA}")
    e(f"s_lshr_b32 s{sNA}, s{sRBA}, 1"); e(f"s_add_u32 s{sNA}, s{sNA}, 1")
    e(f"s_lshr_b32 s{sNB}, s{sRBB}, 1"); e(f"s_add_u32 s{sNB}, s{sNB}, 1")
    e(f"s_lshl_b32 s{sT}, s{sI}, 1"); e(f"s_sub_u32 s{sNS}, 32, s{sT}")
    e("s_waitcnt lgkmcnt(0)")
    A.srd(S_W, 40, 4 << 20); A.srd(S_WS, 42, WS_BYTES); A.srd(S_KV, 42, 32 << 20)
    sGW, sMW, sX = 44, 45, 46
    e(f"s_lshl_b32 s{sGW}, s{sW}, 18"); e(f"s_lshl_b32 s{sT}, s{sH}, 8"); e(f"s_add_u32 s{sGW}, s{sGW}, s{sT}")
    e(f"s_lshl_b32 s{sMW}, s{sW}, 13")
    e(f"s_lshl_b32 s{sX}, s{sRBA}, 15"); e(f"s_add_u32 s{sX}, s{sX}, {WS_XN}"); e(f"s_add_u32 s{sX+1}, s{sX}, 16384")
    e(f"s_lshl_b32 s{sX+2}, s{sRBB}, 15"); e(f"s_add_u32 s{sX+2}, s{sX+2}, {WS_XN}"); e(f"s_add_u32 s{sX+3}, s{sX+2}, 16384")
    e(f"s_lshl_b32 s{sG}, s{sH}, 20"); e(f"s_add_u32 s{sG}, s{sG}, s{sMW}"); e(f"s_add_u32 s{sM}, s{sMW}, {4*SLOT}")

    def wq_stage(st):
        out = []
        for u in range(8):
            if u == 0: pre = [f"s_add_u32 m0, s{sMW}, {st*SLOT}"] + ([f"s_add_u32 s{sGW}, s{sGW}, {128*8192 - 7*32768 + 3072}"] if st else [])
            elif u == 4: pre = [f"s_add_u32 m0, s{sMW}, {st*SLOT+4096}", f"s_add_u32 s{sGW}, s{sGW}, {32768+3072}"]
            else: pre = [f"s_add_u32 s{sGW}, s{sGW}, {32768-1024}"]
            off = f" offset:{(u%4)*1024}" if u % 4 else ""
            out.append((pre, f"buffer_load_dwordx4 v{vDW[(u>>1)&1]}, s[{S_W}:{S_W+3}], s{sGW} offen{off} lds", f"w{st}"))
        for k in range(4):
            ks = 4 * st + k
            for q in range(4):
                pre = [f"s_add_u32 s{sX+q}, s{sX+q}, 4096"] if (k == 0 and ks) else []
                out.append((pre, f"buffer_load_dwordx4 {a(16*ks+4*q,4)}, v{vLIN}, s[{S_WS}:{S_WS+3}], s{sX+q} offen" + (f" offset:{k*1024}" if k else ""), f"x{ks}"))
        return out

    for st in range(2):
        for pre, m, tag in wq_stage(st):
            e(pre)
            if pre and "m0" in pre[-1]: e("s_nop 0")
            e(m); vm.issue(tag)
    e("v_lshrrev_b32 v24, 2, v21"); e("v_lshl_add_u32 v25, v22, 3, v24")
    e("v_lshlrev_b32 v24, 2, v24"); e("v_and_b32 v26, 1, v22"); e("v_lshl_add_u32 v24, v26, 1, v24")
    e("v_bfe_u32 v26, v21, 1, 1"); e("v_xor_b32 v24, v24, v26"); e("v_lshlrev_b32 v24, 4, v24")
    e("v_lshl_add_u32 v24, v25, 8, v24"); e("v_and_b32 v26, 1, v21"); e(f"v_lshl_add_u32 v{vRW[0]}, v26, 3, v24")
    for dt in range(1, 8): e(f"v_xor_b32 v{vRW[dt]}, {dt*32}, v{vRW[0]}")
    e(f"v_add_u32 v{vKAD}, {4*SLOT}, v{vLIN}"); e(f"v_mov_b32 v{vVAD}, v{vKAD}"); e(f"s_mov_b32 s{sR}, {4*SLOT}")
    e("v_lshlrev_b32 v24, 2, v22"); e("v_sub_u32 v24, v21, v24"); e(f"v_mov_b32 v25, {NEG}")
    for i in range(4): e(f"v_cmp_gt_i32 s[{52+2*i}:{53+2*i}], {i}, v24")
    for i in range(4): e(f"v_cndmask_b32 v{vTRI+i}, 0, v25, s[{52+2*i}:{53+2*i}]")
    WF = 32; QA = 128
    def wreads(ks):
        st, k = ks // 4, ks % 4
        return [[f"ds_read_b64_tr_b16 {v(WF+4*dt+2*hf,2)}, v{vRW[dt]} offset:{(st%2)*SLOT + k*8192 + hf*1024}" for hf in range(2)] for dt in range(8)]
    e(f"s_waitcnt vmcnt({vm.cnt('w0')})"); e("s_barrier")
    stamp(A, 1)
    e(wreads(0)[:7])
    pendq = wq_stage(2) + wq_stage(3)
    sched = {ks: pendq[6*ks:6*ks+6] for ks in range(8)}
    tails = {}
    for n, k0 in ((0, 8), (1, 9), (2, 10), (3, 12)):
        d, tail = dma_ops()
        sched[k0] = [(pre, m, f"kv{n}") for pre, m in d]; tails[k0] = tail
    e(f"s_waitcnt vmcnt({vm.cnt('x0')}) lgkmcnt(6)")
    for ks in range(16):
        mf = [f"{MF} {v(QA+32*q+4*dt,4)}, {v(WF+4*dt,4)}, {a(16*ks+4*q,4)}, {v(QA+32*q+4*dt,4) if ks else '0'}" for dt in range(8) for q in (range(4) if dt % 2 == 0 else range(3, -1, -1))]
        g = {}
        cur = wreads(ks)
        add_gap(g, 0, cur[7][0]); add_gap(g, 1, cur[7][1])
        if ks % 4 == 3:
            tag = 'w%d' % (ks // 4 + 1) if ks < 15 else 'kv0'
            add_gap(g, 2, [f"s_waitcnt vmcnt({vm.cnt(tag)}) lgkmcnt(0)", "s_barrier"])
            if ks == 7:
                for dt in range(8): add_gap(g, 3 if dt < 2 else 4 * (dt // 2) + 2, f"v_add_u32 v{vRW[dt]}, {2*SLOT}, v{vRW[dt]}")
        if ks < 15:
            nx = wreads(ks + 1)
            for dt in range(7): add_gap(g, 4 * dt + 4, nx[dt][0]); add_gap(g, 4 * dt + 5, nx[dt][1])
            g.setdefault(15, []).insert(0, "s_waitcnt lgkmcnt(6)")
        else:
            for i, x in enumerate(kread(0) + vread(0)): add_gap(g, 4 + i, x)
            for k in range(4): add_gap(g, 22 + k, f"v_accvgpr_write_b32 a{aONE+k}, v26")
        if ks == 14: add_gap(g, 3, "v_mov_b32 v26, 0x3f803f80")
        for i, (pre, m, tag) in enumerate(sched.get(ks, [])):
            gi = 4 * i + 3
            for j, x in enumerate(pre): g.setdefault(gi - len(pre) + j, []).insert(1 if (g.get(gi - len(pre) + j) and g[gi - len(pre) + j][0].startswith("s_waitcnt")) else 0, x)
            add_gap(g, gi, m); vm.issue(tag)
        for x in tails.get(ks, []): add_gap(g, 31, x)
        if ks < 15:
            add_gap(g, 31, f"s_waitcnt vmcnt({vm.cnt('x%d' % (ks+1))}) lgkmcnt(6)")
        if VERBOSE: print("q", ks, show_gaps(mf, g))
        weave(A, mf, g)
    stamp(A, 2)
    e("s_nop 7")
    for k in range(32): e(f"v_cvt_pk_bf16_f32 v{vQ['A']+k}, v{QA+2*k}, v{QA+2*k+1}")
    cvB = [f"v_cvt_pk_bf16_f32 v{vQ['B']+k}, v{QA+64+2*k}, v{QA+64+2*k+1}" for k in range(32)]
    for k in range(16): e(f"v_mov_b32 v{vC['A'][0]+k}, 0")
    Lz = A.newlabel("q0")
    e(f"s_cmp_lg_u32 s{sRBA}, 0"); e(f"s_cbranch_scc1 {Lz}")
    c = vC["A"][0]
    for i in range(4): e(f"v_mov_b32 v{c+i}, v{vTRI+i}"); e(f"v_mov_b32 v{c+4+i}, {NEG}"); e(f"v_mov_b32 v{c+12+i}, v{vTRI+i}")
    A.label(Lz)
    e("s_waitcnt lgkmcnt(0)"); e("s_nop 0")
    g = {}
    schedule(g, 16, [(x, 0, 15) for x in cvB], level=2)
    weave(A, qk("A", vS["A"], vC["A"][0]), g)
    g = {}
    for i, x in enumerate(kread(1)): add_gap(g, 8 + i, x)
    rm = rowmax("A", 28)
    add_gap(g, 0, "s_nop 1"); add_gap(g, 1, "s_nop 1")
    schedule(g, 16, [(x, 0 if i < 4 else 3, 99) for i, x in enumerate(rm[:22])], level=2, start=2, partial=True)
    done = sum(1 for L in g.values() for x in L if not x.startswith("ds_")) - 2
    weave(A, qk("B", vS["B"], "0"), g)
    e(rm[done:])
    e(f"s_waitcnt vmcnt({vm.cnt('kv1')})"); e("s_barrier")
    d, tail = dma_ops()
    sm = sm_flat(vS["A"], vP["A"])
    for u in range(5):
        e(d[u][0]); e(sm[5*u:5*u+5]); e(d[u][1])
    e(fillc("A", 28, 1)); e(fillc("A", 28, 0))
    e(rowmax("B", 28)); e(fillc("B", 28, 1)); e(fillc("B", 28, 0))
    e(f"s_mov_b32 s{sN}, 0")
    Lnm = A.newlabel("nomask")
    e(f"s_cmp_lg_u32 s{sNA}, 1"); e(f"s_cbranch_scc1 {Lnm}")
    last_mask(A, "A")
    A.label(Lnm)
    e("s_waitcnt lgkmcnt(0)")
    stamp(A, 3)
    mf, g = dual_body(first=True)
    weave(A, mf[68:], {k - 68: x for k, x in g.items() if k >= 68})
    e("s_branch L_k2_dual_end")
    mf, g = dual_body()
    if VERBOSE: print("dual", show_gaps(mf, g))
    e(".p2align 6")
    A.label("L_k2_dual")
    weave(A, mf, g)
    A.label("L_k2_dual_end")
    e("s_cbranch_scc1 L_k2_dual")
    e(f"s_cmp_ge_u32 s{sN}, s{sNA}"); e("s_cbranch_scc1 L_k2_trans")
    last_mask(A, "A")
    e("s_branch L_k2_dual")
    A.label("L_k2_trans")
    e("s_waitcnt lgkmcnt(0)")
    g = {}
    add_gap(g, 12, ["s_waitcnt vmcnt(16)", "s_barrier"])
    o, p = softmax(vS["B"], vP["B"], 0, NPRE)
    schedule(g, 18, [(x[0], 0, 16) for x in o] + [(p[0][0], 17, 17)], level=3, closed={12})
    weave(A, pv("A", vP["A"]), g)
    Lsk = A.newlabel("noepi")
    e(f"s_cmp_ge_u32 s{sW}, 2"); e(f"s_cbranch_scc1 {Lsk}")
    epilogue(A, "A")
    A.label(Lsk)
    Lnm = A.newlabel("nomask")
    e(f"s_add_u32 s{sT2}, s{sN}, 1"); e(f"s_cmp_lg_u32 s{sT2}, s{sNB}"); e(f"s_cbranch_scc1 {Lnm}")
    last_mask(A, "B")
    A.label(Lnm)
    mf, g, post, BAR = single_body()
    if VERBOSE: print("single", show_gaps(mf, g), post)
    wrapped = set(vread(1))
    g1 = {k: [y for y in x if y != "s_barrier" and y not in wrapped] for k, x in g.items() if k <= BAR}
    weave(A, mf[:BAR+1], g1)
    e("s_branch L_k2_single_mid")
    e(".p2align 6")
    A.label("L_k2_single")
    weave(A, mf[:BAR+1], g)
    A.label("L_k2_single_mid")
    weave(A, mf[BAR+1:], {k - BAR - 1: x for k, x in g.items() if k > BAR})
    e(post)
    e("s_cbranch_scc1 L_k2_single")
    e(f"s_cmp_ge_u32 s{sN}, s{sNB}"); e("s_cbranch_scc1 L_k2_drain")
    last_mask(A, "B")
    e("s_branch L_k2_single")
    A.label("L_k2_drain")
    stamp(A, 4)
    e([y for k in range(BAR + 1) for y in g.get(k, []) if y in wrapped])
    e(sm_flat(vS["B"], vP["B"], NPRE, 16))
    e("s_waitcnt lgkmcnt(0)")
    Lnb = A.newlabel("nobar")
    e(f"s_cmp_lt_u32 s{sW}, 2"); e(f"s_cbranch_scc1 {Lnb}")
    e("s_barrier")
    A.label(Lnb)
    e(pv("B", vP["B"]))
    Lsk = A.newlabel("noepi")
    e(f"s_cmp_lt_u32 s{sW}, 2"); e(f"s_cbranch_scc1 {Lsk}")
    epilogue(A, "A")
    A.label(Lsk)
    epilogue(A, "B")
    stamp(A, 5)
    if STAMPS_ON(): e("s_waitcnt vmcnt(0)")
    stamp(A, 6)
    stamp_flush(A, 1, 7, S_WS, sW)
    A.label("L_k2_end")
    e("s_endpgm")
```

```python
from asmlib import *

HID_PAIRS = 44
HID_BYTES = 128 * HID_PAIRS * 1024
CTX16 = True

def decode_hid(t):
    import torch
    t = t.view(128, HID_PAIRS, 4, 16, 2, 4)
    return t.permute(0, 3, 1, 4, 2, 5).reshape(2048, HID_PAIRS * 32)[:, :1376]

def decode_h(t):
    t = t.view(128, 16, 4, 16, 2, 4)
    return t.permute(0, 3, 1, 4, 2, 5).reshape(2048, 512)

S_W, S_WS, S_X, S_O = 4, 8, 12, 16
sW, sRB, sCB, sG, sB0, sT, sT2, sN, sM = 20, 21, 22, 23, 24, 28, 29, 30, 31

def common(A, tag):
    e = A.e
    e("s_cmp_ge_u32 s2, 256"); e(f"s_cbranch_scc1 L_{tag}_end")
    stamp(A, 0)
    e("v_and_b32 v1, 63, v0"); e("v_lshrrev_b32 v20, 6, v0"); e("s_nop 0"); e(f"v_readfirstlane_b32 s{sW}, v20")
    e(f"s_and_b32 s{sRB}, s2, 31"); e(f"s_lshr_b32 s{sCB}, s2, 5")
    e("s_getpc_b64 s[50:51]"); e("v_lshlrev_b32 v20, 6, v0"); e("global_load_dword v19, v20, s[50:51]")
    e("v_and_b32 v21, 15, v1"); e("v_lshrrev_b32 v22, 4, v1"); e("v_lshlrev_b32 v2, 4, v1")

def gen_df(A, name, isF):
    tag = "kf" if isF else "kd"
    kernel_header(A, name)
    e = A.e
    common(A, tag)
    NST = 11 if isF else 32
    DP = 4
    e(f"s_load_dwordx2 s[40:41], s[0:1], {KA_W2 if isF else KA_WO}")
    e(f"s_load_dwordx2 s[42:43], s[0:1], {KA_WS}")
    e(f"s_load_dwordx2 s[44:45], s[0:1], {KA_B2 if isF else KA_X}")
    e(f"s_load_dwordx2 s[46:47], s[0:1], {KA_OUT}")
    vLIN, vB = 2, 3
    vD = [4, 5, 6, 7]; vR = [8, 9, 10, 11]
    e("v_lshrrev_b32 v23, 3, v1"); e("v_lshlrev_b32 v23, 10, v23"); e("v_lshlrev_b32 v24, 1, v22"); e("v_and_b32 v25, 7, v1"); e("v_xor_b32 v24, v24, v25")
    e(f"v_lshl_add_u32 v{vD[0]}, v24, 4, v23")
    for u in range(1, 4): e(f"v_add_u32 v{vD[u]}, {u*7168}, v{vD[0]}")
    pi = isF or CTX16
    e("v_lshrrev_b32 v23, 2, v21")
    if pi: e("v_lshl_add_u32 v23, v22, 2, v23")
    else:
        e("v_and_b32 v24, 1, v22"); e("v_lshl_add_u32 v23, v24, 2, v23"); e("v_lshrrev_b32 v24, 1, v22"); e("v_lshl_add_u32 v23, v24, 4, v23")
    HALF = (16 if pi else 8) * 128
    e("v_bfe_u32 v24, v23, 1, 2"); e("v_lshlrev_b32 v24, 1, v24"); e("v_bfe_u32 v25, v21, 1, 1"); e("v_xor_b32 v24, v24, v25")
    e("v_lshlrev_b32 v24, 4, v24"); e("v_lshl_add_u32 v24, v23, 7, v24"); e("v_and_b32 v25, 1, v21"); e("v_lshl_add_u32 v24, v25, 3, v24")
    e(f"s_mul_i32 s{sM}, s{sW}, 40960"); e(f"v_add_u32 v{vR[0]}, s{sM}, v24")
    for mt in range(1, 4): e(f"v_xor_b32 v{vR[mt]}, {mt*32}, v{vR[0]}")
    if pi: e(f"v_mov_b32 v{vB}, v{vLIN}")
    else: e(f"v_lshlrev_b32 v{vB}, 4, v21"); e(f"v_lshl_add_u32 v{vB}, v22, 9, v{vB}")
    e("s_waitcnt lgkmcnt(0)")
    A.srd(S_W, 40, 1376 * 1024 if isF else 4 << 20); A.srd(S_WS, 42, WS_BYTES)
    A.srd(S_X, 44, 1024 if isF else 2 << 20); A.srd(S_O, 46, 2 << 20)
    e(f"s_mul_i32 s{sG}, s{sW}, {NST*32*1024}"); e(f"s_lshl_b32 s{sT}, s{sCB}, 7"); e(f"s_add_u32 s{sG}, s{sG}, s{sT}")
    if isF: qstride, kstep, base = HID_PAIRS * 1024, 1024, WS_HID
    elif CTX16: qstride, kstep, base = 131072, 1024, WS_CTX
    else: qstride, kstep, base = None, 2048, WS_CTX
    e(f"s_mul_i32 s{sT}, s{sW}, {NST*kstep}")
    if qstride:
        e(f"s_mul_i32 s{sB0}, s{sRB}, {4*qstride}"); offs = [q * qstride for q in range(4)]
    else:
        e(f"s_lshl_b32 s{sB0}, s{sRB}, 19"); offs = [0, 256, 262144, 262144 + 256]
    e(f"s_add_u32 s{sB0}, s{sB0}, s{sT}"); e(f"s_add_u32 s{sB0}, s{sB0}, {base}")
    for q in range(1, 4): e(f"s_add_u32 s{sB0+q}, s{sB0}, {offs[q]}")
    BR = 64
    AF = (32, 48)
    NR = DP + 1
    vm = VM(); vm.issue("pf")
    vX = 160
    if isF:
        e(f"s_lshl_b32 s{sT}, s{sRB}, 2"); e(f"s_add_u32 s{sT}, s{sT}, s{sW}"); e(f"s_lshl_b32 s{sT}, s{sT}, 14"); e(f"s_lshl_b32 s{sT2}, s{sCB}, 11")
        e(f"s_add_u32 s{sT}, s{sT}, s{sT2}"); e(f"s_add_u32 s{sT}, s{sT}, {WS_H}")
        for u in range(2): e(f"buffer_load_dwordx4 {v(vX+4*u,4)}, v{vLIN}, s[{S_WS}:{S_WS+3}], s{sT} offen offset:{u*1024}")
        e("v_lshlrev_b32 v23, 3, v22"); e(f"s_lshl_b32 s{sT}, s{sCB}, 7")
        for mt in range(4): e(f"buffer_load_dwordx2 {v(vX+8+2*mt,2)}, v23, s[{S_X}:{S_X+3}], s{sT} offen offset:{mt*32}")
        vm.issue("res", 6)
    e("v_lshlrev_b32 v12, 10, v21"); e("v_lshl_add_u32 v12, v22, 3, v12")
    e(f"s_lshl_b32 s33, s{sRB}, 2"); e(f"s_add_u32 s33, s33, s{sW}"); e("s_lshl_b32 s33, s33, 14"); e(f"s_lshl_b32 s{sT2}, s{sCB}, 7"); e(f"s_add_u32 s33, s33, s{sT2}")
    if not isF:
        for mt in range(4): e(f"buffer_load_dwordx2 {v(vX+2*mt,2)}, v12, s[{S_X}:{S_X+3}], s33 offen offset:{mt*32}")
        vm.issue("res", 4)

    def loads(st):
        sl = st % NR
        out = []
        for u in range(4):
            pre = [f"s_add_u32 m0, s{sM}, {sl*4096}"] if u == 0 else []
            if isF and st == NST - 1 and u == 0: pre.append(f"s_mov_b32 s{S_W+2}, s35")
            out.append((pre, f"buffer_load_dwordx4 v{vD[u]}, s[{S_W}:{S_W+3}], s{sG} offen" + (f" offset:{u*1024}" if u else "") + " lds"))
        per = 4096 // kstep
        for q in range(4):
            pre = [f"s_add_u32 s{sG}, s{sG}, 32768"] if q == 0 else []
            if st and st % per == 0: pre.append(f"s_add_u32 s{sB0+q}, s{sB0+q}, 4096")
            off = (st % per) * kstep
            if isF and st == NST - 1:
                pre.append(f"s_sub_u32 s{sB0+q}, s{sB0+q}, s34")
            out.append((pre, f"buffer_load_dwordx4 {v(BR+16*sl+4*q,4)}, v{vB}, s[{S_WS}:{S_WS+3}], s{sB0+q} offen" + (f" offset:{off}" if off else "")))
        return out
    if isF:
        e(f"s_cmp_eq_u32 s{sW}, 3"); e("s_cselect_b32 s34, 1024, 0"); e(f"s_cselect_b32 s35, 0, s{S_W+2}")
    def treads(st):
        return [f"ds_read_b64_tr_b16 {v(AF[st%2]+4*mt+2*hf,2)}, v{vR[mt]} offset:{(st%NR)*4096 + hf*HALF}" for mt in range(4) for hf in range(2)]
    for st in range(DP):
        for pre, m in loads(st):
            e(pre)
            if pre and "m0" in pre[-1]: e("s_nop 0")
            e(m); vm.issue(f"s{st}")
    e(f"s_waitcnt vmcnt({vm.cnt('s0')})")
    stamp(A, 1)
    e(treads(0))
    for st in range(NST):
        mf = [f"v_mfma_f32_16x16x32_bf16 {a(16*q+4*mt,4)}, {v(AF[st%2]+4*mt,4)}, {v(BR+16*(st%NR)+4*q,4)}, {a(16*q+4*mt,4) if st else '0'}" for mt in range(4) for q in range(4)]
        g = {}
        e(f"s_waitcnt lgkmcnt(0)" + (f" vmcnt({vm.cnt('s%d' % (st+1))})" if st + 1 < NST else ""))
        if st + 1 < NST:
            for i, x in enumerate(treads(st + 1)): add_gap(g, 2 * i, x)
        if st + DP < NST:
            for i, (pre, m) in enumerate(loads(st + DP)):
                for x in pre: g.setdefault(2 * i, []).insert(0, x)
                add_gap(g, 2 * i + 1, m); vm.issue(f"s{st+DP}")
        weave(A, mf, g)
    stamp(A, 2)
    e(f"v_add_u32 v13, s{sM}, v{vLIN}")
    e("s_nop 5")
    for q in range(4):
        for mt in range(4): e(f"ds_write_b128 v13, {a(16*q+4*mt,4)} offset:{(q*4+mt)*1024}")
    e(f"s_lshl_b32 s{sT}, s{sW}, 12"); e(f"v_add_u32 v14, s{sT}, v{vLIN}"); e(f"v_add_u32 v15, {2*40960}, v14")
    e("s_waitcnt lgkmcnt(0)"); e("s_barrier")
    for src in range(4):
        for mt in range(4): e(f"ds_read_b128 {v(64+16*src+4*mt,4)}, v{14 + src//2} offset:{(src%2)*40960 + mt*1024}")
    R = 176
    nres = 8
    e("s_waitcnt vmcnt(0)")
    for k in range(8):
        e(f"v_lshlrev_b32 v{R+2*k}, 16, v{vX+k}"); e(f"v_and_b32 v{R+2*k+1}, 0xffff0000, v{vX+k}")
    if isF:
        for k in range(8):
            e(f"v_lshlrev_b32 v23, 16, v{vX+8+k}"); e(f"v_and_b32 v24, 0xffff0000, v{vX+8+k}")
            e(f"v_add_f32 v{R+2*k}, v{R+2*k}, v23"); e(f"v_add_f32 v{R+2*k+1}, v{R+2*k+1}, v24")
    for src in range(4):
        e(f"s_waitcnt lgkmcnt({12-4*src})")
        for k in range(8): e(f"v_pk_add_f32 {v(R+2*k,2)}, {v(R+2*k,2)}, {v(64+16*src+2*k,2)}")
    for k in range(8): e(f"v_cvt_pk_bf16_f32 v{vX+k}, v{R+2*k}, v{R+2*k+1}")
    if isF:
        for mt in range(4): e(f"buffer_store_dwordx2 {v(vX+2*mt,2)}, v12, s[{S_O}:{S_O+3}], s33 offen offset:{mt*32}")
    else:
        e(f"s_lshl_b32 s{sT}, s{sRB}, 2"); e(f"s_add_u32 s{sT}, s{sT}, s{sW}"); e(f"s_lshl_b32 s34, s{sT}, 10"); e(f"s_lshl_b32 s{sT}, s{sT}, 14"); e(f"s_lshl_b32 s{sT2}, s{sCB}, 11")
        e(f"s_add_u32 s{sT}, s{sT}, s{sT2}"); e(f"s_add_u32 s{sT}, s{sT}, {WS_H}")
        for u in range(2): e(f"buffer_store_dwordx4 {v(vX+4*u,4)}, v{vLIN}, s[{S_WS}:{S_WS+3}], s{sT} offen offset:{u*1024}")
        for k in range(8):
            e(f"v_lshlrev_b32 v{R+2*k}, 16, v{vX+k}"); e(f"v_and_b32 v{R+2*k+1}, 0xffff0000, v{vX+k}")
        def xsum(d):
            e(f"v_mov_b32 v{d+1}, v{d}"); e("s_nop 1"); e(f"v_permlane16_swap_b32 v{d}, v{d+1}"); e(f"v_add_f32 v{d}, v{d}, v{d+1}")
            e(f"v_mov_b32 v{d+1}, v{d}"); e("s_nop 1"); e(f"v_permlane32_swap_b32 v{d}, v{d+1}"); e(f"v_add_f32 v{d}, v{d}, v{d+1}")
        e(f"v_add_f32 v24, v{R}, v{R+1}")
        for k in range(2, 16): e(f"v_add_f32 v24, v24, v{R+k}")
        xsum(24)
        e("v_mul_f32 v24, 0x3c800000, v24")
        for k in range(16): e(f"v_sub_f32 v{R+k}, v{R+k}, v24")
        e(f"v_mul_f32 v26, v{R}, v{R}")
        for k in range(1, 16): e(f"v_fmac_f32 v26, v{R+k}, v{R+k}")
        xsum(26)
        e("v_mov_b32 v25, v26")
        e("v_lshlrev_b32 v23, 6, v21"); e(f"s_lshl_b32 s{sT2}, s{sCB}, 3"); e(f"s_add_u32 s34, s34, s{sT2}"); e(f"s_add_u32 s34, s34, {WS_ST}")
        e("s_mov_b64 exec, 0xffff")
        e(f"buffer_store_dwordx2 v[24:25], v23, s[{S_WS}:{S_WS+3}], s34 offen")
        e("s_mov_b64 exec, -1")
    stamp(A, 3)
    if STAMPS_ON(): e("s_waitcnt vmcnt(0)")
    stamp(A, 4)
    stamp_flush(A, 4 if isF else 2, 5, S_WS, sW)
    A.label(f"L_{tag}_end")
    e("s_endpgm")

def gen_d(A, name): gen_df(A, name, False)
def gen_f(A, name): gen_df(A, name, True)

def gen_e(A, name):
    kernel_header(A, name)
    e = A.e
    common(A, "ke")
    e(f"s_load_dwordx4 s[40:43], s[0:1], {KA_W1}")
    e(f"s_load_dwordx2 s[44:45], s[0:1], {KA_WS}")
    vLIN = 2; vD = [4, 5, 6]; vR = 7
    for j in range(3):
        e(f"v_add_u32 v23, {64*j}, v1"); e("v_mul_u32_u24 v24, 0x2aab, v23"); e("v_lshrrev_b32 v24, 16, v24")
        e("v_mul_u32_u24 v25, 6, v24"); e("v_sub_u32 v25, v23, v25"); e("v_mul_u32_u24 v24, 2752, v24")
        e(f"v_lshl_add_u32 v{vD[j]}, v25, 4, v24")
        if j: e(f"v_subrev_u32 v{vD[j]}, {1024*j}, v{vD[j]}")
    HB = 98304
    e(f"s_mul_i32 s{sM}, s{sW}, 24576")
    e("v_lshrrev_b32 v23, 2, v21"); e("v_lshl_add_u32 v23, v22, 2, v23"); e("v_mul_u32_u24 v23, 96, v23"); e("v_and_b32 v24, 3, v21")
    e("v_lshl_add_u32 v23, v24, 3, v23"); e(f"v_add_u32 v{vR}, s{sM}, v23")
    e(f"v_add_u32 v8, {HB}, v{vLIN}")
    e("s_waitcnt lgkmcnt(0)")
    A.srd(S_W, 40, 512 * 2752); A.srd(S_WS, 44, WS_BYTES); A.srd(S_X, 42, 2752)
    e(f"s_lshl_b32 s33, s{sCB}, 2"); e(f"s_add_u32 s33, s33, s{sW}")
    e(f"s_mul_i32 s{sG}, s33, 96")
    vm = VM(); vm.issue("pf")
    e(f"s_lshl_b32 s{sT}, s{sRB}, 2"); e(f"s_add_u32 s{sT}, s{sT}, s{sW}"); e(f"s_lshl_b32 s{sT}, s{sT}, 14"); e(f"s_add_u32 s{sT}, s{sT}, {WS_H}")
    e(f"s_lshl_b32 s{sT2}, s{sW}, 14"); e(f"s_add_u32 s{sT2}, s{sT2}, {HB}")
    for k in range(16):
        if k % 4 == 0:
            e(f"s_add_u32 m0, s{sT2}, {k*1024}"); e(f"s_add_u32 s34, s{sT}, {k*1024}")
        e(f"buffer_load_dwordx4 v{vLIN}, s[{S_WS}:{S_WS+3}], s34 offen" + (f" offset:{(k%4)*1024}" if k % 4 else "") + " lds"); vm.issue("h")
    vST = 32
    e("v_lshlrev_b32 v23, 6, v21"); e("v_lshl_add_u32 v23, v22, 4, v23"); e(f"s_lshl_b32 s{sT}, s{sRB}, 12"); e(f"s_add_u32 s{sT}, s{sT}, {WS_ST}")
    for q in range(4): e(f"buffer_load_dwordx4 {v(vST+4*q,4)}, v23, s[{S_WS}:{S_WS+3}], s{sT} offen offset:{q*1024}"); vm.issue("st")
    vB1 = 48
    e("v_lshlrev_b32 v23, 3, v22")
    for t in range(3): e(f"buffer_load_dwordx2 {v(vB1+2*t,2)}, v23, s[{S_X}:{S_X+3}], s{sG} offen offset:{t*32}"); vm.issue("b1")
    Lidle = "L_ke_idle"
    e("s_cmp_ge_u32 s33, 29"); e(f"s_cbranch_scc1 {Lidle}")
    def wload(ks):
        e(f"s_add_u32 m0, s{sM}, {(ks%8)*3072}")
        e(f"s_add_u32 s35, s{sG}, {ks*32*2752}")
        for j in range(3):
            e(f"buffer_load_dwordx4 v{vD[j]}, s[{S_W}:{S_W+3}], s35 offen" + (f" offset:{j*1024}" if j else "") + " lds"); vm.issue(f"w{ks}")
    for ks in range(8): wload(ks)
    vONE = 56; vCS = 60
    for k in range(4): e(f"v_mov_b32 v{vONE+k}, 0x3f803f80")
    for ks in range(16):
        e(f"s_waitcnt vmcnt({vm.cnt('w%d' % ks)})")
        for t in range(3):
            for hf in range(2): e(f"ds_read_b64_tr_b16 {a(12*ks+4*t+2*hf,2)}, v{vR} offset:{(ks%8)*3072 + hf*1536 + t*32}")
        if ks:
            for t in range(3): e(f"v_mfma_f32_16x16x32_bf16 {v(vCS+4*t,4)}, {a(12*(ks-1)+4*t,4)}, {v(vONE,4)}, {v(vCS+4*t,4) if ks > 1 else '0'}")
        e("s_waitcnt lgkmcnt(0)")
        if ks < 8: wload(ks + 8)
        if ks == 0:
            e("s_barrier")
            stamp(A, 1)
            def xsum(d, t):
                e(f"v_mov_b32 v{t}, v{d}"); e("s_nop 1"); e(f"v_permlane16_swap_b32 v{d}, v{t}"); e(f"v_add_f32 v{d}, v{d}, v{t}")
                e(f"v_mov_b32 v{t}, v{d}"); e("s_nop 1"); e(f"v_permlane32_swap_b32 v{d}, v{t}"); e(f"v_add_f32 v{d}, v{d}, v{t}")
            e("v_mov_b32 v30, 0x3727c5ac")
            for q in range(4):
                b = vST + 4 * q
                e(f"v_add_f32 v24, v{b}, v{b+2}"); xsum(24, 25); e("v_mul_f32 v24, 0x3e000000, v24")
                e(f"v_sub_f32 v{b}, v{b}, v24"); e(f"v_sub_f32 v{b+2}, v{b+2}, v24")
                e(f"v_mul_f32 v26, v{b}, v{b}"); e(f"v_fmac_f32 v26, v{b+2}, v{b+2}"); e(f"v_add_f32 v27, v{b+1}, v{b+3}")
                e("v_fmac_f32 v27, 0x42800000, v26"); xsum(27, 25)
                e("v_mul_f32 v27, 0x3b000000, v27")
                e("v_add_f32 v26, v27, v30"); e("v_rsq_f32 v26, v26"); e("s_nop 0")
                e("v_mul_f32 v27, v27, v26"); e("v_fma_f32 v27, v27, v26, v30"); e("v_rsq_f32 v27, v27"); e("s_nop 0")
                e(f"v_mul_f32 v{b}, v26, v27")
                e(f"v_mul_f32 v{b+1}, v{b}, v24"); e(f"v_sub_f32 v{b+1}, 0, v{b+1}")
            for k in range(6):
                e(f"v_lshlrev_b32 v{72+2*k}, 16, v{vB1+k}"); e(f"v_and_b32 v{73+2*k}, 0xffff0000, v{vB1+k}")
    for t in range(3): e(f"v_mfma_f32_16x16x32_bf16 {v(vCS+4*t,4)}, {a(12*15+4*t,4)}, {v(vONE,4)}, {v(vCS+4*t,4)}")
    stamp(A, 2)
    HF = 128
    ACC = (96, 112)
    e(f"s_mul_i32 s34, s{sRB}, {4*HID_PAIRS*1024}"); e(f"s_add_u32 s34, s34, {WS_HID}")
    for t in range(3):
        e(f"s_mul_i32 s{sT}, s33, 3"); e(f"s_add_u32 s{sT}, s{sT}, {t}"); e(f"s_and_b32 s{sT2}, s{sT}, 1"); e(f"s_lshr_b32 s{sT}, s{sT}, 1")
        e(f"s_lshl_b32 s{sT}, s{sT}, 7"); e(f"s_add_u32 s{sT}, s{sT}, s{sT2}"); e(f"s_lshl_b32 s{sT}, s{sT}, 3"); e(f"s_add_u32 s{36+t}, s34, s{sT}")
    e("s_mov_b32 s40, 0xc0135761"); e("v_mov_b32 v31, 0xbdd2d3e8")
    def gelu(q):
        ops = []
        b = vST + 4 * q; acc = ACC[q % 2]
        for t in range(3):
            for half in range(2):
                es = [4 * t + 2 * half, 4 * t + 2 * half + 1]
                T = lambda k, n: 200 + 4 * (k % 2) + n
                for k in es: ops.append(f"v_fma_f32 v{T(k,0)}, v{b+1}, v{vCS+k}, v{72+k}")
                for k in es: ops.append(f"v_fmac_f32 v{T(k,0)}, v{b}, v{acc+k}")
                for k in es: ops.append(f"v_mul_f32 v{T(k,1)}, v{T(k,0)}, v{T(k,0)}")
                for k in es: ops.append(f"v_fma_f32 v{T(k,1)}, v{T(k,1)}, v31, s40")
                for k in es: ops.append(f"v_mul_f32 v{T(k,1)}, v{T(k,1)}, v{T(k,0)}")
                for k in es: ops.append(f"v_exp_f32 v{T(k,1)}, v{T(k,1)}")
                for k in es: ops.append(f"v_add_f32 v{T(k,1)}, 1.0, v{T(k,1)}")
                for k in es: ops.append(f"v_rcp_f32 v{T(k,1)}, v{T(k,1)}")
                for k in es: ops.append(f"v_mul_f32 v{T(k,0)}, v{T(k,0)}, v{T(k,1)}")
                ops.append(f"v_cvt_pk_bf16_f32 v{208+2*t+half}, v{T(es[0],0)}, v{T(es[1],0)}")
            ops.append(f"buffer_store_dwordx2 {v(208+2*t,2)}, v{vLIN}, s[{S_WS}:{S_WS+3}], s{36+t} offen")
            ops.append(f"s_add_u32 s{36+t}, s{36+t}, {HID_PAIRS*1024}")
        return ops
    def hread(q, ks): return f"ds_read_b128 {v(HF+4*ks,4)}, v8 offset:{q*16384 + ks*1024}"
    for ks in range(16): e(hread(0, ks))
    for q in range(4):
        acc = ACC[q % 2]
        mf = [f"v_mfma_f32_16x16x32_bf16 {v(acc+4*t,4)}, {a(12*ks+4*t,4)}, {v(HF+4*ks,4)}, {v(acc+4*t,4) if ks else '0'}" for ks in range(16) for t in range(3)]
        g = {}
        e("s_waitcnt lgkmcnt(8)")
        add_gap(g, 23, "s_waitcnt lgkmcnt(7)" if q < 3 else "s_waitcnt lgkmcnt(0)")
        if q < 3:
            for ks in range(16): add_gap(g, 3 * ks + 2, hread(q + 1, ks))
        if q:
            add_gap(g, 0, "s_nop 1"); add_gap(g, 1, "s_nop 1")
            schedule(g, 48, [(x, 2, 47) for x in gelu(q - 1)], level=4)
        weave(A, mf, g)
    e("s_nop 7")
    e(gelu(3))
    stamp(A, 3)
    if STAMPS_ON(): e("s_waitcnt vmcnt(0)")
    stamp(A, 4)
    stamp_flush(A, 3, 5, S_WS, sW)
    e("s_endpgm")
    A.label(Lidle)
    e("s_waitcnt vmcnt(0)"); e("s_barrier")
    A.label("L_ke_end")
    e("s_endpgm")
```

```python
import sys
from asmlib import *
import fused, tail, chk
from gen import build
fused.VERBOSE = bool(os.environ.get("V"))
KERNELS = [("front_kernel", fused.gen_front, 256, 163840, {}),
           ("kd_kernel", tail.gen_d, 256, 163840, {}), ("ke_kernel", tail.gen_e, 256, 163840, {}), ("kf_kernel", tail.gen_f, 256, 163840, {})]
if __name__ == "__main__":
    txt = build(KERNELS)
    out = sys.argv[1] if len(sys.argv) > 1 else "out.s"
    open(out, "w").write(txt)
    errs, n = chk.check(txt, [k[0] for k in KERNELS])
    print(n, "instructions,", len(errs), "problems")
    for x in errs[:40]: print(x)
```
